```python
import torch

def _softmax(x, axis=-1):
    return torch.softmax(x, dim=axis)

def _gelu(x):
    return torch.nn.functional.gelu(x, approximate='tanh')

def _silu(x):
    return torch.nn.functional.silu(x)

def _sigmoid(x):
    return torch.sigmoid(x)

def _layernorm(x, axis=-1, eps=1e-05):
    m = x.mean(dim=axis, keepdim=True)
    v = x.var(dim=axis, keepdim=True, unbiased=False)
    return (x - m) / torch.sqrt(v + eps)

def _scatter_add(tgt, idx, src, axis=0):
    return tgt.clone().index_add_(axis, idx, src)

def _segment_sum(src, seg, n):
    out = torch.zeros((n,) + src.shape[1:], dtype=src.dtype)
    return out.index_add_(0, seg, src)

def _pad(x, pw):
    flat = tuple((v for pair in reversed(pw) for v in pair))
    return torch.nn.functional.pad(x, flat)
kernel_name = 'adaLN_cond__sliding_block_cached__dense_activation_silu__decode'

def setup_inputs():

    _w = lambda a: (lambda t: t.to(torch.bfloat16) if t.is_floating_point() else t)(torch.as_tensor(a))

    def _A_setup():
        B, Sq, D = (2, 1, 448)
        Hq, Hkv, Sk, Dh = (16, 8, 8192, 256)
        assert Hq % Hkv == 0, (Hq, Hkv)
        return {'x': _w((lambda *s: torch.randn(*s, dtype=torch.bfloat16) * 0.1)(B, Sq, D)), 'k_cache': _w((lambda *s: torch.randn(*s, dtype=torch.bfloat16) * 0.8)(B, Hkv, Sk, Dh)), 'v_cache': _w((lambda *s: torch.randn(*s, dtype=torch.bfloat16) * 3.2)(B, Hkv, Sk, Dh)), 'wq': _w((lambda *s: torch.randn(*s, dtype=torch.bfloat16) * 0.8)(D, Hq * Dh) * D ** (-0.5)), 'wo': _w((lambda *s: torch.randn(*s, dtype=torch.bfloat16) * 3.2)(Hq * Dh, D) * (Hq * Dh) ** (-0.5))}
    _A_in = _A_setup()

    def _B_setup():
        B, S, D, F = (2, 1, 448, 1792)
        return {'x': _w((lambda *s: torch.randn(*s, dtype=torch.bfloat16) * 0.1)(B, S, D)), 'w1': _w((lambda *s: torch.randn(*s, dtype=torch.bfloat16) * 3.2)(D, F) * D ** (-0.5)), 'w2': _w((lambda *s: torch.randn(*s, dtype=torch.bfloat16) * 3.2)(F, D) * F ** (-0.5))}
    _B_in = _B_setup()
    return {'A_x': _A_in['x'], 'A_k_cache': _A_in['k_cache'], 'A_v_cache': _A_in['v_cache'], 'A_wq': _A_in['wq'], 'A_wo': _A_in['wo'], 'B_x': _B_in['x'], 'B_w1': _B_in['w1'], 'B_w2': _B_in['w2'], 'c': _w((lambda *s: torch.randn(*s, dtype=torch.bfloat16) * 0.2)(2, 448) * 8.0), 'w_mod': _w((lambda *s: torch.randn(*s, dtype=torch.bfloat16) * 0.2)(448, 6 * 448) * 448 ** (-0.5) * 8.0)}

def reference(A_x, A_k_cache, A_v_cache, A_wq, A_wo, B_x, B_w1, B_w2, c, w_mod):

    def _A_ref(x, k_cache, v_cache, wq, wo):
        B, Sq, D = x.shape
        Hq, Dh = (16, 256)
        Hkv, Sk = (k_cache.shape[1], k_cache.shape[2])
        W = min(4096, max(256, Sk // 4))
        rep = Hq // Hkv
        q = (lambda x, *d: x.permute(*d))((x @ wq).reshape(B, Sq, Hq, Dh), 0, 2, 1, 3)
        k = (lambda x, n, axis: torch.repeat_interleave(x, n, dim=axis))(k_cache[:, :, Sk - W:, :], rep, axis=1)
        v = (lambda x, n, axis: torch.repeat_interleave(x, n, dim=axis))(v_cache[:, :, Sk - W:, :], rep, axis=1)
        scores = torch.einsum('bhqd,bhkd->bhqk', q, k) * Dh ** (-0.5)
        p = _softmax(scores, axis=-1)
        o = torch.einsum('bhqk,bhkd->bhqd', p, v)
        return (lambda x, *d: x.permute(*d))(o, 0, 2, 1, 3).reshape(B, Sq, Hq * Dh) @ wo

    def _B_ref(x, w1, w2):
        h = torch.einsum('bsd,df->bsf', x, w1)
        h = _silu(h)
        out = torch.einsum('bsf,fd->bsd', h, w2)
        return out
    x = A_x
    mod = (_silu(c) @ w_mod).reshape(c.shape[0], 6, 1, -1)
    sa, ca, ga, sb, cb, gb = (mod[:, 0].clone(), mod[:, 1].clone(), mod[:, 2].clone(), mod[:, 3].clone(), mod[:, 4].clone(), mod[:, 5].clone())
    h = _layernorm(x, axis=-1) * (1 + ca) + sa
    x = x + ga * _A_ref(h, A_k_cache, A_v_cache, A_wq, A_wo)
    h = _layernorm(x, axis=-1) * (1 + cb) + sb
    x = x + gb * _B_ref(h, B_w1, B_w2)
    return x
```

```python
import re

TRANS = ("v_exp_f32", "v_log_f32", "v_rcp_f32", "v_rsq_f32", "v_sqrt_f32", "v_sin_f32", "v_cos_f32")
_REG = re.compile(r"(?<![\w.])(-?\|?)(v|s|a)(?:(\d+)|\[(\d+):(\d+)\])(?![\w])|(?<![\w])(vcc|exec|m0|scc)(?![\w])")


def regs_of(tok):
    out = []
    for m in _REG.finditer(tok):
        if m.group(6):
            out.append((m.group(6), 0))
        else:
            k = m.group(2)
            if m.group(3) is not None:
                out.append((k, int(m.group(3))))
            else:
                out += [(k, i) for i in range(int(m.group(4)), int(m.group(5)) + 1)]
    return out


class Ins:
    def __init__(self, text):
        self.text = text
        t = text.split(";")[0].strip()
        self.label = None
        self.kind = None
        self.dst = set()
        self.src = set()
        self.srcc = set()
        self.ws = 1
        self.target = None
        if not t or t.startswith("."):
            self.kind = "none"
            self.ws = 0
            return
        if t.endswith(":"):
            self.kind = "label"
            self.label = t[:-1]
            self.ws = 0
            return
        parts = t.split(None, 1)
        op = parts[0]
        self.op = op
        rest = parts[1] if len(parts) > 1 else ""
        ops = [o.strip() for o in rest.split(",")]
        R = [regs_of(o) for o in ops]
        allr = [r for x in R for r in x]
        if op.startswith("v_mfma"):
            self.kind = "mfma"
            self.dst = set(R[0])
            self.src = set(R[1]) | set(R[2])
            self.srcc = set(R[3]) if len(R) > 3 else set()
        elif op.startswith("v_"):
            self.kind = "valu"
            self.trans = op.replace("_e32", "").replace("_e64", "") in TRANS
            self.perm = op.startswith("v_permlane")
            self.dpp = ("_dpp" in op) or ("row_" in rest) or ("quad_perm" in rest)
            self.rl = op.startswith("v_readlane") or op.startswith("v_readfirstlane")
            self.wl = op.startswith("v_writelane")
            if self.perm:
                self.dst = set(R[0]) | set(R[1])
                self.src = set(R[0]) | set(R[1])
            elif op.startswith("v_add_co") or op.startswith("v_sub_co") or op.startswith("v_addc_co"):
                self.dst = set(R[0]) | set(R[1])
                self.src = set(r for x in R[2:] for r in x)
            else:
                self.dst = set(R[0])
                self.src = set(r for x in R[1:] for r in x)
                if op.startswith("v_fmac") or op.startswith("v_dot2c") or self.wl or self.dpp:
                    self.src |= set(R[0])
            if op.startswith("v_cndmask") and len(ops) == 3:
                self.src.add(("vcc", 0))
        elif op.startswith("buffer_") or op.startswith("global_"):
            self.kind = "vmem"
            self.lds = bool(re.search(r"\blds\b", rest))
            self.store = "store" in op or ("atomic" in op)
            self.wide = self.store and ("x4" in op or "x3" in op)
            if self.lds or self.store:
                self.src = set(allr)
                if self.wide:
                    self.data = set(R[0]) if op.startswith("buffer_") else set(R[1])
            else:
                self.dst = set(R[0])
                self.src = set(r for x in R[1:] for r in x)
        elif op.startswith("ds_"):
            self.kind = "ds"
            if op.startswith("ds_read") or op.startswith("ds_bpermute") or op.startswith("ds_swizzle") or op.startswith("ds_permute"):
                self.dst = set(R[0])
                self.src = set(r for x in R[1:] for r in x)
            else:
                self.src = set(allr)
        elif op.startswith("s_"):
            self.kind = "salu"
            if op == "s_nop":
                self.ws = int(ops[0], 0) + 1
            elif op.startswith("s_cbranch") or op == "s_branch":
                self.target = ops[0]
            elif op.startswith("s_cmp") or op.startswith("s_bitcmp") or op in ("s_waitcnt", "s_barrier", "s_endpgm", "s_sleep", "s_setprio"):
                self.src = set(allr)
            else:
                self.dst = set(R[0]) if R else set()
                self.src = set(r for x in R[1:] for r in x)
        else:
            raise ValueError("unknown instruction: " + text)


def vg(s):
    return {r for r in s if r[0] in ("v", "a")}


def sg(s):
    return {r for r in s if r[0] in ("s", "vcc")}


def need(p, c):
    n = 0
    if p.kind == "valu":
        pv = vg(p.dst)
        ps = sg(p.dst)
        if c.kind == "mfma" and pv & (c.src | c.srcc):
            n = max(n, 2)
        if p.trans and pv & (c.src | c.srcc):
            n = max(n, 1)
        if c.kind == "valu":
            if (c.perm or c.dpp) and pv & c.src:
                n = max(n, 2)
            if c.rl and pv & c.src:
                n = max(n, 1)
            if ps & c.src:
                n = max(n, 4 if (c.rl or c.wl) else 2)
        if c.kind == "vmem" and ps & c.src:
            n = max(n, 5)
    if p.kind == "mfma":
        d = p.dst
        if c.kind == "mfma":
            if d & c.src:
                n = max(n, 8)
            if d & c.srcc and d != c.srcc:
                n = max(n, 6)
            if d & c.dst and not (d == c.srcc and d == c.dst):
                n = max(n, 8)
        elif c.kind in ("valu", "vmem", "ds"):
            if d & (c.src | c.dst):
                n = max(n, 8)
        if c.kind == "valu" and p.srcc & c.dst:
            n = max(n, 3)
    if p.kind == "salu" and ("m0", 0) in p.dst and c.kind == "vmem" and c.lds:
        n = max(n, 1)
    if p.kind == "vmem" and getattr(p, "wide", False):
        if p.data & c.dst:
            n = max(n, 2)
    return n


def pad(lines):
    ins = [Ins(l) for l in lines]
    changed = True
    it = 0
    while changed:
        changed = False
        it += 1
        assert it < 2000
        labels = {x.label: i for i, x in enumerate(ins) if x.kind == "label"}
        for i, c in enumerate(ins):
            if c.kind in ("none", "label"):
                continue
            dist = 0
            j = i - 1
            short = 0
            while j >= 0 and dist < 10:
                p = ins[j]
                if p.kind == "salu" and p.op in ("s_branch", "s_endpgm", "s_setpc_b64"):
                    break
                if p.kind not in ("none", "label"):
                    k = need(p, c)
                    if k > dist:
                        short = max(short, k - dist)
                dist += p.ws
                j -= 1
            if short:
                ins.insert(i, Ins(f"  s_nop {short-1}"))
                changed = True
                break
            if c.kind == "salu" and c.target in labels:
                t = labels[c.target]
                fw = []
                d = 0
                k = t
                while k < len(ins) and d < 10:
                    if ins[k].kind not in ("none", "label"):
                        fw.append((ins[k], d))
                        d += ins[k].ws
                        if ins[k].kind == "salu" and ins[k].op in ("s_branch", "s_endpgm"):
                            break
                    k += 1
                dist = 1
                j = i - 1
                short = 0
                while j >= 0 and dist < 10:
                    p = ins[j]
                    if p.kind == "salu" and p.op in ("s_branch", "s_endpgm", "s_setpc_b64"):
                        break
                    if p.kind not in ("none", "label"):
                        for (f, fd) in fw:
                            kk = need(p, f)
                            if kk > dist + fd:
                                short = max(short, kk - dist - fd)
                    dist += p.ws
                    j -= 1
                if short:
                    ins.insert(i, Ins(f"  s_nop {short-1}"))
                    changed = True
                    break
    return [x.text for x in ins]


class Asm:
    def __init__(self):
        self.L = []

    def __call__(self, s):
        for line in s.split("\n"):
            if line.strip():
                l = line.strip()
                self.L.append(l if l.endswith(":") else "  " + l)

    def text(self):
        return "\n".join(pad(self.L)) + "\n"
```

```python
import sys
from asmlib import Asm
NAME = "adaLN_cond__sliding_block_cached__dense_activation_silu__decode"

EPOCH = 0
G_MOD = 0x1000
G_Q = 0x8000
S0 = 0x10000
P3 = 0x10000
L3 = 0x50000
P4 = 0x51000
P5 = 0x58000
STAMPS = 0x100000
WT = 0
W2T = 57344
XV = 114688
QL = 118272
X2F = 119424
ACT = 121216
RED = 121344
OST = 123392
OC = 123520
LDS_BYTES = 140288
SPIN = 1 << 16

HDR = open("cdna_kernels/" + NAME + ".s.ref").read().split("; Override launch")[0]


def gen(stamps=False):
    A = Asm()
    nst = [0]

    def STAMP(i):
        if stamps:
            A(f"s_memrealtime s[{64+2*i}:{65+2*i}]")
            A("s_waitcnt lgkmcnt(0)")

    def srd(d, p, size):
        A(f"s_mov_b32 s{d}, s{p}")
        A(f"s_mov_b32 s{d+1}, s{p+1}")
        A(f"s_mov_b32 s{d+2}, {size}")
        A(f"s_mov_b32 s{d+3}, 0x20000")

    A(f"{NAME}_kernel:")
    A("s_cmp_ge_u32 s2, 256")
    A("s_cbranch_scc1 L_exit")
    A("s_load_dwordx16 s[32:47], s[0:1], 0")
    A("s_load_dwordx8 s[48:55], s[0:1], 64")
    A("s_load_dwordx2 s[56:57], s[0:1], 96")
    if stamps:
        for i in range(16):
            A(f"s_mov_b32 s{64+2*i}, 0")
    A("v_and_b32 v1, 63, v0")
    A("v_lshrrev_b32 v14, 6, v0")
    A("v_and_b32 v2, 15, v0")
    A("v_readfirstlane_b32 s3, v14")
    A("v_lshrrev_b32 v3, 4, v1")
    A("v_lshlrev_b32 v4, 9, v2")
    A("v_lshl_add_u32 v4, v3, 4, v4")
    A("v_lshlrev_b32 v5, 11, v3")
    A("v_lshl_add_u32 v5, v2, 4, v5")
    A("v_lshlrev_b32 v6, 3, v0")
    A("s_and_b32 s4, s2, 15")
    A("s_lshr_b32 s5, s2, 4")
    A("s_lshl_b32 s6, s4, 13")
    A("s_lshl_b32 s7, s5, 7")
    A("s_add_u32 s6, s6, s7")
    A("s_lshl_b32 s7, s3, 4")
    A("s_add_u32 s6, s6, s7")
    A("s_add_u32 s6, s6, 6144")
    A("s_lshl_b32 s6, s6, 9")
    A("v_lshrrev_b32 v8, 3, v1")
    A("v_and_b32 v7, 7, v1")
    A("v_and_b32 v14, 1, v3")
    A("v_lshlrev_b32 v14, 1, v14")
    A("v_xor_b32 v7, v7, v14")
    A("v_lshlrev_b32 v7, 4, v7")
    A("v_lshrrev_b32 v15, 2, v2")
    A("v_lshl_add_u32 v9, v3, 3, v15")
    A("v_lshlrev_b32 v9, 7, v9")
    A("v_lshrrev_b32 v15, 1, v15")
    A("v_or_b32 v15, v15, v14")
    A("v_lshl_add_u32 v9, v15, 5, v9")
    A("v_and_b32 v15, 3, v2")
    A("v_lshl_add_u32 v9, v15, 3, v9")
    A("v_mul_u32_u24 v13, 896, v15")
    A("v_lshl_add_u32 v13, v3, 4, v13")
    A(f"v_add_u32 v13, {XV}, v13")
    A("s_waitcnt lgkmcnt(0)")
    A(f"s_load_dword s59, s[56:57], {EPOCH}")
    STAMP(0)
    srd(8, 34, 0x4000000)
    srd(12, 36, 0x4000000)
    srd(16, 56, 0x10000000)
    A("s_cmp_lt_u32 s2, 42")
    A("s_cbranch_scc1 L_front_mod")
    A("s_cmp_lt_u32 s2, 48")
    A("s_cbranch_scc1 L_att")
    A("s_cmp_lt_u32 s2, 112")
    A("s_cbranch_scc1 L_front_q")
    A("s_branch L_att")

    def dma_coop(n_per_wave, lds_base):
        A("s_and_b32 s62, s3, 1")
        A("s_lshl_b32 s62, s62, 6")
        A("v_xor_b32 v14, s62, v7")
        A("v_mul_lo_u32 v15, v8, s60")
        A("v_add_u32 v14, v14, v15")
        A("s_lshl_b32 s62, s3, 3")
        A("s_mul_i32 s62, s62, s60")
        A("s_add_u32 s62, s62, s61")
        A("s_lshl_b32 s63, s60, 6")
        A("s_lshl_b32 s30, s3, 10")
        A(f"s_add_u32 m0, s30, {lds_base}")
        for i in range(n_per_wave):
            A("buffer_load_dwordx4 v14, s[20:23], s62 offen nt lds")
            if i != n_per_wave - 1:
                A("s_add_u32 s62, s62, s63")
                A("s_add_u32 m0, m0, 8192")

    def dma_own(srdn, lds_sgpr):
        A("v_mul_lo_u32 v15, v8, s60")
        A("v_add_u32 v14, v7, v15")
        A("v_xor_b32 v15, 64, v7")
        A("v_mul_lo_u32 v10, v8, s60")
        A("v_add_u32 v15, v15, v10")
        A("s_lshl_b32 s63, s60, 3")
        A(f"s_mov_b32 m0, {lds_sgpr}")
        for i in range(8):
            A(f"buffer_load_dwordx4 v{14 if i%2==0 else 15}, s[{srdn}:{srdn+3}], s61 offen nt lds")
            if i != 7:
                A("s_add_u32 s61, s61, s63")
                A("s_add_u32 m0, m0, 1024")

    def mk_tag():
        A("s_mul_i32 s58, s59, 0x9E3779B1")
        A("s_add_u32 s58, s58, 0x7F4A7C15")

    def bload448(breg):
        A("s_lshl_b32 s30, s3, 5")
        A("v_xor_b32 v10, s30, v9")
        for ks in range(14):
            A(f"ds_read_b64_tr_b16 v[{breg+4*ks}:{breg+4*ks+1}], v10 offset:{WT+ks*4096}")
            A(f"ds_read_b64_tr_b16 v[{breg+4*ks+2}:{breg+4*ks+3}], v10 offset:{WT+ks*4096+512}")

    def aload448(areg):
        for ks in range(14):
            A(f"ds_read_b128 v[{areg+4*ks}:{areg+4*ks+3}], v13 offset:{ks*64}")

    def mfma448(breg, areg, acc, extra_lgkm=0, fill=None):
        for ks in range(14):
            A(f"s_waitcnt lgkmcnt({min(15, 13-ks+extra_lgkm)})")
            c = "0" if ks == 0 else f"v[{acc}:{acc+3}]"
            A(f"v_mfma_f32_16x16x32_bf16 v[{acc}:{acc+3}], v[{areg+4*ks}:{areg+4*ks+3}], v[{breg+4*ks}:{breg+4*ks+3}], {c}")
            if fill is not None:
                fill(ks)

    BREG, AREG, ACC = 16, 104, 160

    A("L_front_mod:")
    srd(24, 48, 1792)
    A("v_lshlrev_b32 v10, 2, v0")
    A("buffer_load_dword v11, v10, s[24:27], 0 offen")
    srd(20, 50, 448 * 5376)
    A("s_movk_i32 s60, 5376")
    A("s_lshl_b32 s61, s2, 7")
    dma_coop(7, WT)
    A(f"s_lshl_b32 s31, s2, 9")
    A(f"s_add_u32 s31, s31, {G_MOD}")
    A("s_waitcnt vmcnt(7)")
    A("v_lshlrev_b32 v16, 16, v11")
    A("v_and_b32 v17, 0xffff0000, v11")
    A("v_mul_f32 v18, 0xbfb8aa3b, v16")
    A("v_mul_f32 v19, 0xbfb8aa3b, v17")
    A("v_exp_f32 v18, v18")
    A("v_exp_f32 v19, v19")
    A("v_add_f32 v18, 1.0, v18")
    A("v_add_f32 v19, 1.0, v19")
    A("v_rcp_f32 v18, v18")
    A("v_rcp_f32 v19, v19")
    A("v_mul_f32 v16, v16, v18")
    A("v_mul_f32 v17, v17, v19")
    A("v_cvt_pk_bf16_f32 v16, v16, v17")
    A(f"v_add_u32 v10, {XV}, v10")
    A("ds_write_b32 v10, v16")
    A("s_cmp_ge_u32 s2, 14")
    A("s_cbranch_scc1 L_noprefill")
    A("v_mov_b32 v20, -1")
    A("v_mov_b32 v21, -1")
    A("v_mov_b32 v22, -1")
    A("v_mov_b32 v23, -1")
    A("v_lshlrev_b32 v12, 4, v0")
    A("s_lshl_b32 s62, s2, 15")
    A(f"s_add_u32 s62, s62, {S0}")
    for i in range(4):
        A("buffer_store_dwordx4 v[20:23], v12, s[16:19], s62 offen sc1")
        if i != 3:
            A("s_add_u32 s62, s62, 8192")
    A("L_noprefill:")
    A("s_waitcnt vmcnt(0) lgkmcnt(0)")
    mk_tag()
    A("s_barrier")
    STAMP(1)
    A("s_cmp_ge_u32 s3, 4")
    A("s_cbranch_scc1 L_front_done")
    bload448(BREG)
    A("s_branch L_front_gemv")

    A("L_front_q:")
    srd(24, 32, 1792)
    A("v_lshlrev_b32 v10, 4, v1")
    A("v_lshlrev_b32 v11, 1, v0")
    A("v_mov_b32 v12, 0x10000")
    A("v_cmp_gt_u32 vcc, 56, v1")
    A("v_cndmask_b32 v10, v12, v10, vcc")
    A("buffer_load_dwordx4 v[16:19], v10, s[24:27], 0 offen")
    A("buffer_load_dwordx4 v[20:23], v10, s[24:27], 0 offen offset:896")
    A("buffer_load_ushort v24, v11, s[24:27], 0 offen")
    A("buffer_load_ushort v25, v11, s[24:27], 0 offen offset:896")
    srd(20, 38, 448 * 8192)
    A("s_movk_i32 s60, 8192")
    A("s_sub_u32 s61, s2, 48")
    A("s_lshl_b32 s31, s61, 9")
    A(f"s_add_u32 s31, s31, {G_Q}")
    A("s_lshl_b32 s61, s61, 7")
    dma_coop(7, WT)
    A("s_waitcnt vmcnt(7)")

    def wave_sum(r, t):
        for sh in (1, 2, 4, 8):
            A(f"v_add_f32_dpp v{r}, v{r}, v{r} row_ror:{sh} row_mask:0xf bank_mask:0xf")
        A(f"v_mov_b32 v{t}, v{r}")
        A(f"v_permlane16_swap_b32 v{t}, v{r}")
        A(f"v_add_f32 v{r}, v{r}, v{t}")
        A(f"v_mov_b32 v{t}, v{r}")
        A(f"v_permlane32_swap_b32 v{t}, v{r}")
        A(f"v_add_f32 v{r}, v{r}, v{t}")

    for b in range(2):
        for i in range(4):
            A(f"v_lshlrev_b32 v{32+8*b+2*i}, 16, v{16+4*b+i}")
            A(f"v_and_b32 v{33+8*b+2*i}, 0xffff0000, v{16+4*b+i}")
    for b in range(2):
        base = 32 + 8 * b
        A(f"v_add_f32 v{48+b}, v{base}, v{base+1}")
        for i in range(2, 8):
            A(f"v_add_f32 v{48+b}, v{48+b}, v{base+i}")
    wave_sum(48, 50)
    wave_sum(49, 51)
    A("v_mul_f32 v48, 0x3b124925, v48")
    A("v_mul_f32 v49, 0x3b124925, v49")
    for b in range(2):
        base = 32 + 8 * b
        for i in range(8):
            A(f"v_sub_f32 v{base+i}, v{base+i}, v{48+b}")
        A(f"v_mul_f32 v{52+b}, v{base}, v{base}")
        for i in range(1, 8):
            A(f"v_fmac_f32 v{52+b}, v{base+i}, v{base+i}")
        A(f"v_cndmask_b32 v{52+b}, 0, v{52+b}, vcc")
    wave_sum(52, 50)
    wave_sum(53, 51)
    A("v_mov_b32 v54, 0x3727c5ac")
    A("v_fmac_f32 v54, 0x3b124925, v52")
    A("v_mov_b32 v55, 0x3727c5ac")
    A("v_fmac_f32 v55, 0x3b124925, v53")
    A("v_rsq_f32 v54, v54")
    A("v_rsq_f32 v55, v55")
    A("v_lshlrev_b32 v24, 16, v24")
    A("v_lshlrev_b32 v25, 16, v25")
    A("v_sub_f32 v24, v24, v48")
    A("v_sub_f32 v25, v25, v49")
    A("v_mul_f32 v100, v24, v54")
    A("v_mul_f32 v101, v25, v55")
    A("s_waitcnt vmcnt(0) lgkmcnt(0)")
    mk_tag()
    A("s_barrier")
    STAMP(1)
    A("s_cmp_ge_u32 s3, 4")
    A("s_cbranch_scc1 L_q_nob")
    bload448(BREG)
    A("L_q_nob:")
    A("s_cmp_ge_u32 s3, 7")
    A("s_cbranch_scc1 L_q_bar")
    A(f"s_mov_b32 s30, {SPIN}")
    A(f"s_movk_i32 s62, {G_MOD}")
    A("L_q_poll:")
    A("buffer_load_dwordx2 v[96:97], v6, s[16:19], s62 offen sc1")
    A("buffer_load_dwordx2 v[98:99], v6, s[16:19], s62 offen offset:3584 sc1")
    A("s_sub_u32 s30, s30, 1")
    A("s_cbranch_scc1 L_q_got")
    A("s_waitcnt vmcnt(0)")
    A("v_cmp_ne_u32 vcc, s58, v97")
    A("v_cmp_ne_u32 s[28:29], s58, v99")
    A("s_or_b64 vcc, vcc, s[28:29]")
    A("s_cbranch_scc1 L_q_poll")
    A("L_q_got:")
    A("s_waitcnt vmcnt(0)")
    STAMP(2)
    A("v_lshlrev_b32 v102, 16, v98")
    A("v_and_b32 v103, 0xffff0000, v98")
    A("v_add_f32 v102, 1.0, v102")
    A("v_add_f32 v103, 1.0, v103")
    A("v_lshlrev_b32 v98, 16, v96")
    A("v_and_b32 v99, 0xffff0000, v96")
    A("v_fmac_f32 v98, v100, v102")
    A("v_fmac_f32 v99, v101, v103")
    A("v_cvt_pk_bf16_f32 v98, v98, v99")
    A(f"v_add_u32 v11, {XV}, v11")
    A("ds_write_b16 v11, v98")
    A("ds_write_b16_d16_hi v11, v98 offset:896")
    A("L_q_bar:")
    A("s_waitcnt lgkmcnt(0)")
    A("s_barrier")
    A("s_cmp_ge_u32 s3, 4")
    A("s_cbranch_scc1 L_front_done")

    A("L_front_gemv:")
    aload448(AREG)
    mfma448(BREG, AREG, ACC)
    A("s_lshl_b32 s30, s3, 7")
    A("s_add_u32 s31, s31, s30")
    A("v_lshlrev_b32 v10, 3, v1")
    A("s_mov_b64 exec, 0xffff")
    A(f"v_cvt_pk_bf16_f32 v{ACC}, v{ACC}, v{ACC+1}")
    A(f"v_mov_b32 v{ACC+1}, s58")
    A(f"buffer_store_dwordx2 v[{ACC}:{ACC+1}], v10, s[16:19], s31 offen sc1")
    A("s_mov_b64 exec, -1")
    A("L_front_done:")
    A("s_barrier")
    STAMP(3)

    KR, VR, QR = 16, 48, 80
    SA, OA, MK, PA = 112, 116, 124, 128
    A("L_att:")
    for i in range(8):
        A(f"buffer_load_dwordx4 v[{KR+4*i}:{KR+4*i+3}], v4, s[8:11], s6 offen offset:{i*64} nt")
    A("s_and_b32 s7, s4, 7")
    A("s_lshl_b32 s7, s7, 12")
    A(f"s_add_u32 s7, s7, {G_Q}")
    A("buffer_load_dwordx2 v[136:137], v6, s[16:19], s7 offen sc1")
    for r in range(4):
        for dh in range(2):
            i = r * 2 + dh
            A(f"buffer_load_dwordx4 v[{VR+4*i}:{VR+4*i+3}], v5, s[12:15], s6 offen offset:{r*512+dh*256} nt")
    A("v_and_b32 v14, 7, v2")
    A("v_and_b32 v15, 1, v14")
    A("v_lshlrev_b32 v15, 4, v15")
    A("v_mov_b32 v10, 0xffff")
    A("v_lshlrev_b32 v10, v15, v10")
    A("v_lshrrev_b32 v14, 1, v14")
    for k in range(4):
        A(f"v_cmp_eq_u32 vcc, {k}, v14")
        A(f"v_cndmask_b32 v{MK+k}, 0, v10, vcc")
    A("v_lshrrev_b32 v14, 8, v0")
    A("v_mul_u32_u24 v14, 576, v14")
    A("v_and_b32 v15, 255, v0")
    A("v_lshl_add_u32 v14, v15, 1, v14")
    A(f"v_add_u32 v138, {QL}, v14")
    A("v_lshrrev_b32 v14, 3, v2")
    A("v_mul_u32_u24 v14, 576, v14")
    A("v_lshl_add_u32 v14, v3, 4, v14")
    A(f"v_add_u32 v139, {QL}, v14")
    A("s_lshr_b32 s62, s4, 3")
    A("s_lshl_b32 s62, s62, 4")
    A("s_waitcnt lgkmcnt(0)")
    mk_tag()
    A(f"s_mov_b32 s30, {SPIN}")
    A("s_waitcnt vmcnt(8)")
    STAMP(4)
    A("v_cmp_ne_u32 vcc, s58, v137")
    A("s_cbranch_vccz L_att_got")
    A("L_att_poll:")
    A("buffer_load_dwordx2 v[136:137], v6, s[16:19], s7 offen sc1")
    A("s_sub_u32 s30, s30, 1")
    A("s_cbranch_scc1 L_att_to")
    A("s_waitcnt vmcnt(0)")
    A("v_cmp_ne_u32 vcc, s58, v137")
    A("s_cbranch_vccnz L_att_poll")
    A("L_att_to:")
    A("s_waitcnt vmcnt(0)")
    A("L_att_got:")
    A("v_lshrrev_b32 v136, s62, v136")
    A("ds_write_b16 v138, v136")
    A("s_waitcnt lgkmcnt(0)")
    A("s_barrier")
    STAMP(5)
    for i in range(8):
        A(f"ds_read_b128 v[{QR+4*i}:{QR+4*i+3}], v139 offset:{i*64}")
    for i in range(8):
        A(f"s_waitcnt lgkmcnt({7-i})")
        c = "0" if i == 0 else f"v[{SA}:{SA+3}]"
        A(f"v_mfma_f32_16x16x32_bf16 v[{SA}:{SA+3}], v[{KR+4*i}:{KR+4*i+3}], v[{QR+4*i}:{QR+4*i+3}], {c}")
    A("s_mov_b32 s63, 0x3db8aa3b")
    A("v_lshrrev_b32 v14, 1, v3")
    A("v_lshlrev_b32 v14, 10, v14")
    A("v_lshl_add_u32 v14, v2, 5, v14")
    A("v_and_b32 v15, 1, v3")
    A("v_lshl_add_u32 v14, v15, 4, v14")
    A("s_lshl_b32 s30, s3, 11")
    A(f"s_add_u32 s30, s30, {OC}")
    A("v_add_u32 v140, s30, v14")
    A(f"v_max3_f32 v141, v{SA}, v{SA+1}, v{SA+2}")
    A(f"v_max_f32 v141, v141, v{SA+3}")
    A("v_mov_b32 v142, v141")
    A("v_permlane32_swap_b32 v142, v141")
    A("v_max_f32 v141, v141, v142")
    A("v_mov_b32 v142, v141")
    A("v_permlane16_swap_b32 v142, v141")
    A("v_max_f32 v141, v141, v142")
    A("v_mul_f32 v141, s63, v141")
    for r in range(4):
        A(f"v_fma_f32 v{SA+r}, v{SA+r}, s63, -v141")
    for r in range(4):
        A(f"v_exp_f32 v{SA+r}, v{SA+r}")
    A(f"v_add_f32 v142, v{SA}, v{SA+1}")
    A(f"v_add_f32 v143, v{SA+2}, v{SA+3}")
    for r in range(4):
        A(f"v_cvt_pk_bf16_f32 v{144+r}, v{SA+r}, v{SA+r}")
    A("v_add_f32 v142, v142, v143")
    for r in range(4):
        pa = PA + 4 * (r % 2)
        for k in range(4):
            A(f"v_and_b32 v{pa+k}, v{144+r}, v{MK+k}")
        if r == 0:
            A("v_mov_b32 v143, v142")
            A("v_permlane32_swap_b32 v143, v142")
            A("v_add_f32 v142, v142, v143")
            A("v_mov_b32 v143, v142")
            A("v_permlane16_swap_b32 v143, v142")
            A("v_add_f32 v142, v142, v143")
        A(f"s_waitcnt vmcnt({6-2*r})")
        for dh in range(2):
            i = r * 2 + dh
            c = "0" if r == 0 else f"v[{OA+4*dh}:{OA+4*dh+3}]"
            A(f"v_mfma_f32_16x16x32_bf16 v[{OA+4*dh}:{OA+4*dh+3}], v[{pa}:{pa+3}], v[{VR+4*i}:{VR+4*i+3}], {c}")
    STAMP(6)
    A("v_lshrrev_b32 v14, 3, v2")
    A("v_lshlrev_b32 v14, 6, v14")
    A("s_lshl_b32 s30, s3, 2")
    A(f"s_add_u32 s30, s30, {OST}")
    A("v_add_u32 v14, s30, v14")
    A("s_mov_b64 exec, 0x101")
    A("ds_write2_b32 v14, v141, v142 offset0:0 offset1:8")
    A("s_mov_b64 exec, -1")
    A(f"ds_write_b128 v140, v[{OA}:{OA+3}]")
    A(f"ds_write_b128 v140, v[{OA+4}:{OA+7}] offset:512")
    A(f"v_add_u32 v10, {OC}, v6")
    A("v_lshrrev_b32 v11, 7, v0")
    A("v_lshlrev_b32 v11, 6, v11")
    A(f"v_add_u32 v12, {OST}, v11")
    A("s_waitcnt lgkmcnt(0)")
    A("s_barrier")
    A("s_cmp_ge_u32 s3, 4")
    A("s_cbranch_scc1 L_tail")
    for i in range(4):
        A(f"ds_read_b128 v[{16+4*i}:{19+4*i}], v12 offset:{16*i}")
    for w in range(8):
        A(f"ds_read_b64 v[{32+2*w}:{33+2*w}], v10 offset:{w*2048}")
    A("v_lshrrev_b32 v14, 5, v0")
    A("v_lshlrev_b32 v14, 11, v14")
    A("v_and_b32 v15, 31, v0")
    A("v_lshl_add_u32 v14, v15, 2, v14")
    A("s_lshl_b32 s30, s4, 14")
    A("s_lshl_b32 s31, s5, 7")
    A("s_add_u32 s30, s30, s31")
    A(f"s_add_u32 s30, s30, {P3}")
    A("s_lshl_b32 s31, s4, 7")
    A("s_lshl2_add_u32 s31, s5, s31")
    A(f"s_add_u32 s31, s31, {L3}")
    A("s_waitcnt lgkmcnt(10)")
    A("v_max3_f32 v48, v16, v17, v18")
    A("v_max3_f32 v49, v19, v20, v21")
    A("v_max3_f32 v48, v48, v22, v23")
    A("v_max_f32 v48, v48, v49")
    for w in range(8):
        A(f"v_sub_f32 v{16+w}, v{16+w}, v48")
    for w in range(8):
        A(f"v_exp_f32 v{16+w}, v{16+w}")
    A("s_waitcnt lgkmcnt(8)")
    A("v_mul_f32 v49, v16, v24")
    for w in range(1, 8):
        A(f"v_fmac_f32 v49, v{16+w}, v{24+w}")
    A("v_rcp_f32 v50, v49")
    A("v_log_f32 v51, v49")
    A("s_waitcnt lgkmcnt(0)")
    A("v_mul_f32 v52, v16, v32")
    A("v_mul_f32 v53, v16, v33")
    for w in range(1, 8):
        A(f"v_fmac_f32 v52, v{16+w}, v{32+2*w}")
        A(f"v_fmac_f32 v53, v{16+w}, v{33+2*w}")
    A("v_mul_f32 v52, v52, v50")
    A("v_mul_f32 v53, v53, v50")
    A("v_cvt_pk_bf16_f32 v52, v52, v53")
    A("v_min_u32 v52, -2, v52")
    A("buffer_store_dword v52, v14, s[16:19], s30 offen sc1")
    A("v_add_f32 v51, v51, v48")
    A("v_min_u32 v51, -2, v51")
    A("s_bitcmp1_b32 s3, 0")
    A("s_cbranch_scc1 L_tail")
    A("s_mov_b64 exec, 1")
    A("buffer_store_dword v51, v11, s[16:19], s31 offen sc1")
    A("s_mov_b64 exec, -1")

    A("L_tail:")
    STAMP(7)
    A("s_barrier")
    A("s_cmp_lt_u32 s2, 16")
    A("s_cbranch_scc1 L_fin")
    A("s_cmp_lt_u32 s2, 48")
    A("s_cbranch_scc1 L_mlp_lo")
    A("s_cmp_lt_u32 s2, 112")
    A("s_cbranch_scc1 L_fin")
    A("s_cmp_ge_u32 s2, 224")
    A("s_cbranch_scc1 L_mlp_hi")

    A("s_sub_u32 s30, s2, 112")
    A("s_lshr_b32 s31, s30, 4")
    A("s_lshl_b32 s31, s31, 3")
    A("s_and_b32 s62, s30, 7")
    A("s_add_u32 s31, s31, s62")
    A("s_lshr_b32 s30, s30, 3")
    A("s_and_b32 s30, s30, 1")
    A("s_mul_i32 s62, s31, 37")
    A("s_lshr_b32 s62, s62, 8")
    A("s_mul_i32 s63, s62, 7")
    A("s_sub_u32 s31, s31, s63")
    A("s_lshl3_add_u32 s4, s30, s62")
    A("s_mov_b32 s5, s31")
    srd(20, 40, 4096 * 896)
    A("s_movk_i32 s60, 896")
    A("s_lshl_b32 s61, s62, 3")
    A("s_add_u32 s61, s61, s3")
    A("s_mul_i32 s61, s61, 57344")
    A("s_lshl_b32 s63, s5, 7")
    A("s_add_u32 s61, s61, s63")
    A("s_lshl_b32 s7, s3, 13")
    dma_own(20, "s7")
    A("v_lshlrev_b32 v10, 7, v2")
    A("v_lshl_add_u32 v10, v3, 4, v10")
    A("v_lshlrev_b32 v11, 4, v3")
    A("s_lshl_b32 s30, s4, 14")
    A("s_lshl_b32 s31, s3, 11")
    A("s_add_u32 s30, s30, s31")
    A(f"s_add_u32 s30, s30, {P3}")
    A("s_lshl_b32 s31, s4, 7")
    A("s_lshr_b32 s62, s3, 2")
    A("s_lshl_b32 s62, s62, 6")
    A("s_add_u32 s31, s31, s62")
    A(f"s_add_u32 s31, s31, {L3}")
    A("v_add_u32 v12, s7, v9")
    A("v_xor_b32 v13, 32, v12")
    A("v_xor_b32 v14, 64, v12")
    A("v_xor_b32 v15, 0x60, v12")
    A("s_waitcnt vmcnt(0)")
    STAMP(8)
    for ks in range(2):
        for nt in range(4):
            r = 16 + (ks * 4 + nt) * 4
            A(f"ds_read_b64_tr_b16 v[{r}:{r+1}], v{12+nt} offset:{ks*4096}")
            A(f"ds_read_b64_tr_b16 v[{r+2}:{r+3}], v{12+nt} offset:{ks*4096+512}")
    A(f"s_mov_b32 s62, {SPIN}")
    A("L_wo_poll:")
    A("buffer_load_dwordx4 v[48:51], v10, s[16:19], s30 offen sc1")
    A("buffer_load_dwordx4 v[52:55], v10, s[16:19], s30 offen offset:64 sc1")
    A("buffer_load_dwordx4 v[56:59], v11, s[16:19], s31 offen sc1")
    A("s_waitcnt vmcnt(0)")
    A("v_max3_u32 v60, v48, v49, v50")
    A("v_max3_u32 v61, v51, v52, v53")
    A("v_max3_u32 v60, v60, v54, v55")
    A("v_max3_u32 v61, v61, v56, v57")
    A("v_max3_u32 v60, v60, v58, v59")
    A("v_max_u32 v60, v60, v61")
    A("v_cmp_eq_u32 vcc, -1, v60")
    A("s_sub_u32 s62, s62, 1")
    A("s_cbranch_scc1 L_wo_got")
    A("s_and_b64 exec, exec, vcc")
    A("s_cbranch_execnz L_wo_poll")
    A("L_wo_got:")
    A("s_mov_b64 exec, -1")
    STAMP(9)
    A("s_waitcnt lgkmcnt(0)")
    for ks in range(2):
        for nt in range(4):
            r = 16 + (ks * 4 + nt) * 4
            c = "0" if ks == 0 else f"v[{64+4*nt}:{67+4*nt}]"
            A(f"v_mfma_f32_16x16x32_bf16 v[{64+4*nt}:{67+4*nt}], v[{48+4*ks}:{51+4*ks}], v[{r}:{r+3}], {c}")
    A("v_max3_f32 v60, v56, v57, v58")
    A("v_max_f32 v60, v60, v59")
    A("v_mov_b32 v61, v60")
    A("v_permlane32_swap_b32 v61, v60")
    A("v_max_f32 v60, v60, v61")
    A("v_mov_b32 v61, v60")
    A("v_permlane16_swap_b32 v61, v60")
    A("v_max_f32 v60, v60, v61")
    for r in range(4):
        A(f"v_sub_f32 v{56+r}, v{56+r}, v60")
    for r in range(4):
        A(f"v_exp_f32 v{56+r}, v{56+r}")
    A("v_add_f32 v60, v56, v57")
    A("v_add_f32 v61, v58, v59")
    A("v_add_f32 v60, v60, v61")
    A("v_mov_b32 v61, v60")
    A("v_permlane32_swap_b32 v61, v60")
    A("v_add_f32 v60, v60, v61")
    A("v_mov_b32 v61, v60")
    A("v_permlane16_swap_b32 v61, v60")
    A("v_add_f32 v60, v60, v61")
    A("v_rcp_f32 v60, v60")
    for nt in range(4):
        A(f"v_mul_f32 v{80+nt}, v56, v{64+4*nt}")
    for r in range(1, 4):
        for nt in range(4):
            A(f"v_fmac_f32 v{80+nt}, v{56+r}, v{64+4*nt+r}")

    def treduce(r0, r1, r2, r3):
        A(f"v_permlane32_swap_b32 v{r0}, v{r2}")
        A(f"v_permlane32_swap_b32 v{r1}, v{r3}")
        A(f"v_add_f32 v{r0}, v{r0}, v{r2}")
        A(f"v_add_f32 v{r1}, v{r1}, v{r3}")
        A(f"v_permlane16_swap_b32 v{r0}, v{r1}")
        A(f"v_add_f32 v{r0}, v{r0}, v{r1}")

    treduce(80, 81, 82, 83)
    A("v_mul_f32 v80, v80, v60")
    A("v_lshlrev_b32 v10, 2, v0")
    A(f"v_add_u32 v10, {RED}, v10")
    A("ds_write_b32 v10, v80")
    A("s_waitcnt lgkmcnt(0)")
    A("s_barrier")
    A("s_cmp_lg_u32 s3, 0")
    A("s_cbranch_scc1 L_fin")
    for i in range(4):
        A(f"ds_read2st64_b32 v[{16+2*i}:{17+2*i}], v10 offset0:{2*i} offset1:{2*i+1}")
    A("s_mul_i32 s30, s4, 1792")
    A("s_lshl_b32 s31, s5, 8")
    A("s_add_u32 s30, s30, s31")
    A(f"s_add_u32 s30, s30, {P4}")
    A("v_lshlrev_b32 v11, 2, v1")
    A("s_waitcnt lgkmcnt(0)")
    A("v_add_f32 v16, v16, v17")
    A("v_add_f32 v18, v18, v19")
    A("v_add_f32 v20, v20, v21")
    A("v_add_f32 v22, v22, v23")
    A("v_add_f32 v16, v16, v18")
    A("v_add_f32 v20, v20, v22")
    A("v_add_f32 v16, v16, v20")
    A("v_min_u32 v16, -2, v16")
    A("buffer_store_dword v16, v11, s[16:19], s30 offen sc1")
    STAMP(10)
    A("s_branch L_fin")

    A("L_mlp_lo:")
    A("s_sub_u32 s30, s2, 16")
    A("s_branch L_mlp")
    A("L_mlp_hi:")
    A("s_sub_u32 s30, s2, 192")
    A("L_mlp:")
    A("s_lshr_b32 s31, s30, 4")
    A("s_lshl_b32 s31, s31, 3")
    A("s_and_b32 s62, s30, 7")
    A("s_add_u32 s5, s31, s62")
    A("s_lshr_b32 s4, s30, 3")
    A("s_and_b32 s4, s4, 1")
    A("s_cmp_ge_u32 s5, 28")
    A("s_cbranch_scc1 L_fin")
    srd(24, 32, 1792)
    A("v_lshlrev_b32 v11, 1, v0")
    A("s_mul_i32 s30, s4, 896")
    A("buffer_load_ushort v164, v11, s[24:27], s30 offen")
    srd(20, 44, 448 * 3584)
    A("s_movk_i32 s60, 3584")
    A("s_lshl_b32 s61, s5, 7")
    dma_coop(7, WT)
    srd(24, 46, 1792 * 896)
    A("s_cmp_ge_u32 s3, 7")
    A("s_cbranch_scc1 L_mlp_w7")
    A("s_movk_i32 s60, 896")
    A("s_mul_i32 s61, s5, 57344")
    A("s_lshl_b32 s63, s3, 7")
    A("s_add_u32 s61, s61, s63")
    A("s_lshl_b32 s7, s3, 13")
    A(f"s_add_u32 s7, s7, {W2T}")
    dma_own(24, "s7")
    A(f"s_mov_b32 s30, {SPIN}")
    A(f"s_movk_i32 s62, {G_MOD+896*8}")
    A(f"s_movk_i32 s63, {G_MOD+1792*8}")
    A("L_mlp_mpoll:")
    A("buffer_load_dwordx2 v[166:167], v6, s[16:19], s62 offen sc1")
    A("buffer_load_dwordx2 v[168:169], v6, s[16:19], s62 offen offset:3584 sc1")
    A("buffer_load_dwordx2 v[170:171], v6, s[16:19], s63 offen sc1")
    A("s_sub_u32 s30, s30, 1")
    A("s_cbranch_scc1 L_mlp_mgot")
    A("s_waitcnt vmcnt(0)")
    A("v_cmp_ne_u32 vcc, s58, v167")
    A("v_cmp_ne_u32 s[28:29], s58, v169")
    A("s_or_b64 vcc, vcc, s[28:29]")
    A("v_cmp_ne_u32 s[28:29], s58, v171")
    A("s_or_b64 vcc, vcc, s[28:29]")
    A("s_cbranch_scc1 L_mlp_mpoll")
    A("L_mlp_mgot:")
    A("s_waitcnt vmcnt(0)")
    A("s_lshl_b32 s62, s4, 4")
    A("v_lshrrev_b32 v166, s62, v166")
    A("v_lshrrev_b32 v168, s62, v168")
    A("v_lshrrev_b32 v170, s62, v170")
    A("v_lshlrev_b32 v166, 16, v166")
    A("v_lshlrev_b32 v170, 16, v170")
    A("v_add_f32 v170, 1.0, v170")
    A("v_cvt_pk_bf16_f32 v170, v170, v170")
    A(f"v_add_u32 v165, {XV}, v11")
    A("ds_write_b16 v165, v170 offset:896")
    A("ds_write_b16 v165, v168 offset:1792")
    A("v_and_b32 v170, 0xffff0000, v170")
    A("v_lshlrev_b32 v164, 16, v164")
    A("s_branch L_mlp_join")
    A("L_mlp_w7:")
    A("v_and_b32 v10, 3, v2")
    A("v_lshl_add_u32 v10, v10, 2, v3")
    A("s_lshl_b32 s30, s5, 4")
    A("v_add_u32 v10, s30, v10")
    A("v_lshlrev_b32 v12, 3, v10")
    A(f"s_mov_b32 s30, {SPIN}")
    A(f"s_movk_i32 s62, {G_MOD+2240*8}")
    A("L_mlp_gpoll:")
    A("buffer_load_dwordx2 v[166:167], v12, s[16:19], s62 offen sc1")
    A("s_sub_u32 s30, s30, 1")
    A("s_cbranch_scc1 L_mlp_ggot")
    A("s_waitcnt vmcnt(0)")
    A("v_cmp_ne_u32 vcc, s58, v167")
    A("s_cbranch_vccnz L_mlp_gpoll")
    A("L_mlp_ggot:")
    A("s_waitcnt vmcnt(0)")
    A("s_lshl_b32 s62, s4, 4")
    A("v_lshrrev_b32 v166, s62, v166")
    A("v_lshlrev_b32 v166, 16, v166")
    A("L_mlp_join:")
    A("s_waitcnt vmcnt(0) lgkmcnt(0)")
    A("s_barrier")
    STAMP(8)
    A("s_cmp_ge_u32 s3, 7")
    A("s_cbranch_scc1 L_mlp_bar1")
    A("s_cmp_ge_u32 s3, 4")
    A("s_cbranch_scc1 L_mlp_now1")
    bload448(BREG)
    A("L_mlp_now1:")
    A("v_add_u32 v172, s7, v9")
    A("v_xor_b32 v173, 32, v172")
    A("v_xor_b32 v174, 64, v172")
    A("v_xor_b32 v175, 0x60, v172")
    for ks in range(2):
        for nt in range(4):
            r = 72 + (ks * 4 + nt) * 4
            A(f"ds_read_b64_tr_b16 v[{r}:{r+1}], v{172+nt} offset:{ks*4096}")
            A(f"ds_read_b64_tr_b16 v[{r+2}:{r+3}], v{172+nt} offset:{ks*4096+512}")
    A("v_lshlrev_b32 v10, 2, v0")
    A("s_mul_i32 s30, s4, 14336")
    A(f"s_add_u32 s30, s30, {P4}")
    A("s_add_u32 s31, s30, 5376")
    A("s_add_u32 s63, s30, 10752")
    A(f"s_mov_b32 s62, {SPIN}")
    A("L_mlp_poll:")
    for k in range(8):
        so = ("s30", "s31", "s63")[k // 3]
        A(f"buffer_load_dword v{176+k}, v10, s[16:19], {so} offen offset:{(k%3)*1792} sc1")
    A("s_waitcnt vmcnt(0)")
    A("v_max3_u32 v184, v176, v177, v178")
    A("v_max3_u32 v185, v179, v180, v181")
    A("v_max3_u32 v184, v184, v182, v183")
    A("v_max_u32 v184, v184, v185")
    A("v_cmp_eq_u32 vcc, -1, v184")
    A("s_sub_u32 s62, s62, 1")
    A("s_cbranch_scc1 L_mlp_got")
    A("s_and_b64 exec, exec, vcc")
    A("s_cbranch_execnz L_mlp_poll")
    A("L_mlp_got:")
    A("s_mov_b64 exec, -1")
    STAMP(9)
    A("v_add_f32 v176, v176, v177")
    A("v_add_f32 v178, v178, v179")
    A("v_add_f32 v180, v180, v181")
    A("v_add_f32 v182, v182, v183")
    A("v_add_f32 v176, v176, v178")
    A("v_add_f32 v180, v180, v182")
    A("v_add_f32 v176, v176, v180")
    A("v_fmac_f32 v164, v166, v176")
    A("v_mul_f32 v177, v164, v170")
    A("v_cvt_pk_bf16_f32 v177, v177, v177")
    A(f"v_add_u32 v10, {X2F}, v10")
    A("ds_write_b16 v165, v177")
    A("ds_write_b32 v10, v164")
    A("L_mlp_bar1:")
    A("s_waitcnt lgkmcnt(0)")
    A("s_barrier")
    A("s_cmp_ge_u32 s3, 4")
    A("s_cbranch_scc1 L_mlp_bar2")
    A("v_lshlrev_b32 v10, 2, v1")
    A(f"v_add_u32 v10, {X2F}, v10")
    for i in range(3):
        A(f"ds_read2st64_b32 v[{176+2*i}:{177+2*i}], v10 offset0:{2*i} offset1:{2*i+1}")
    A("ds_read_b32 v182, v10 offset:1536")
    aload448(AREG)
    stat = []
    stat.append(["v_add_f32 v184, v176, v177", "v_mul_f32 v185, v176, v176"])
    stat.append(["v_add_f32 v184, v184, v178", "v_fmac_f32 v185, v177, v177"])
    stat.append(["v_add_f32 v184, v184, v179", "v_fmac_f32 v185, v178, v178"])
    stat.append(["v_add_f32 v184, v184, v180", "v_fmac_f32 v185, v179, v179"])
    stat.append(["v_add_f32 v184, v184, v181", "v_fmac_f32 v185, v180, v180"])
    stat.append(["v_add_f32 v184, v184, v182", "v_fmac_f32 v185, v181, v181", "v_fmac_f32 v185, v182, v182"])
    stat.append(["v_permlane32_swap_b32 v184, v185", "v_add_f32 v184, v184, v185"])
    stat.append(["v_mov_b32 v185, v184", "v_permlane16_swap_b32 v185, v184", "v_add_f32 v184, v184, v185"])
    stat.append(["v_add_f32_dpp v184, v184, v184 row_ror:1 row_mask:0xf bank_mask:0xf"])
    stat.append(["v_add_f32_dpp v184, v184, v184 row_ror:2 row_mask:0xf bank_mask:0xf"])
    stat.append(["v_add_f32_dpp v184, v184, v184 row_ror:4 row_mask:0xf bank_mask:0xf"])
    stat.append(["v_add_f32_dpp v184, v184, v184 row_ror:8 row_mask:0xf bank_mask:0xf"])
    stat.append(["v_mul_f32 v184, 0x3b124925, v184", "v_mov_b32 v185, v184", "v_permlane32_swap_b32 v184, v185"])
    stat.append(["v_fma_f32 v185, -v184, v184, v185", "v_add_f32 v185, 0x3727c5ac, v185", "v_rsq_f32 v185, v185"])

    def fill(ks):
        for s in stat[ks]:
            A(s)
    mfma448(BREG, AREG, ACC, fill=fill)
    A("s_lshl_b32 s30, s3, 5")
    A(f"s_add_u32 s30, s30, {ACT}")
    A("v_lshlrev_b32 v10, 1, v2")
    A("v_add_u32 v10, s30, v10")
    A(f"v_fma_f32 v{ACC}, -v184, v{ACC+1}, v{ACC}")
    A(f"v_fma_f32 v{ACC}, v185, v{ACC}, v{ACC+2}")
    A(f"v_mul_f32 v186, 0xbfb8aa3b, v{ACC}")
    A("v_exp_f32 v186, v186")
    A("v_add_f32 v186, 1.0, v186")
    A("v_rcp_f32 v186, v186")
    A(f"v_mul_f32 v186, v186, v{ACC}")
    A("v_cvt_pk_bf16_f32 v186, v186, v186")
    A("s_mov_b64 exec, 0xffff")
    A("ds_write_b16 v10, v186")
    A("s_mov_b64 exec, -1")
    A("L_mlp_bar2:")
    A("s_waitcnt lgkmcnt(0)")
    A("s_barrier")
    STAMP(10)
    A("s_cmp_ge_u32 s3, 7")
    A("s_cbranch_scc1 L_final")
    A("v_lshlrev_b32 v10, 4, v3")
    A(f"v_add_u32 v10, {ACT}, v10")
    A("ds_read_b128 v[104:107], v10")
    A("ds_read_b128 v[108:111], v10 offset:64")
    A("s_mul_i32 s30, s4, 28")
    A("s_add_u32 s30, s30, s5")
    A("s_mul_i32 s30, s30, 1792")
    A(f"s_add_u32 s30, s30, {P5}")
    A("v_lshlrev_b32 v11, 2, v0")
    A("v_cmp_eq_u32 s[28:29], 1, v3")
    A("v_cmp_eq_u32 s[62:63], 2, v3")
    A("v_cmp_eq_u32 vcc, 3, v3")
    for ks in range(2):
        A(f"s_waitcnt lgkmcnt({1-ks})")
        for nt in range(4):
            r = 72 + (ks * 4 + nt) * 4
            c = "0" if ks == 0 else f"v[{112+4*nt}:{115+4*nt}]"
            A(f"v_mfma_f32_16x16x32_bf16 v[{112+4*nt}:{115+4*nt}], v[{104+4*ks}:{107+4*ks}], v[{r}:{r+3}], {c}")
    A("v_cndmask_b32 v112, v112, v116, s[28:29]")
    A("v_cndmask_b32 v112, v112, v120, s[62:63]")
    A("v_cndmask_b32 v112, v112, v124, vcc")
    A("v_min_u32 v112, -2, v112")
    A("buffer_store_dword v112, v11, s[16:19], s30 offen sc1")
    STAMP(11)
    A("s_branch L_fin")

    A("L_final:")
    A("v_lshlrev_b32 v11, 2, v10")
    A(f"v_add_u32 v11, {X2F}, v11")
    A("ds_read_b32 v164, v11")
    A("v_lshrrev_b32 v12, 2, v1")
    A("s_mul_i32 s30, s4, 28")
    A("v_add_u32 v12, s30, v12")
    A("v_add_u32 v13, 16, v12")
    A("v_subrev_u32 v14, 56, v13")
    A("v_cmp_le_u32 vcc, 56, v13")
    A("v_cndmask_b32 v13, v13, v14, vcc")
    A("v_and_b32 v14, 3, v1")
    A("v_lshlrev_b32 v14, 4, v14")
    A("v_mul_u32_u24 v12, 1792, v12")
    A("v_mul_u32_u24 v13, 1792, v13")
    A("v_add_u32 v12, v12, v14")
    A("v_add_u32 v13, v13, v14")
    A("s_lshl_b32 s30, s5, 6")
    A(f"s_add_u32 s30, s30, {P5}")
    srd(24, 52, 1792)
    A(f"s_mov_b32 s62, {SPIN}")
    A("L_fin_poll:")
    A("buffer_load_dwordx4 v[16:19], v12, s[16:19], s30 offen sc1")
    A("buffer_load_dwordx4 v[20:23], v13, s[16:19], s30 offen sc1")
    A("s_waitcnt vmcnt(0)")
    A("v_max3_u32 v24, v16, v17, v18")
    A("v_max3_u32 v25, v19, v20, v21")
    A("v_max3_u32 v24, v24, v22, v23")
    A("v_max_u32 v24, v24, v25")
    A("v_cmp_eq_u32 vcc, -1, v24")
    A("s_sub_u32 s62, s62, 1")
    A("s_cbranch_scc1 L_fin_got")
    A("s_and_b64 exec, exec, vcc")
    A("s_cbranch_execnz L_fin_poll")
    A("L_fin_got:")
    STAMP(11)
    A("s_mov_b32 exec_lo, -1")
    A("s_mov_b32 exec_hi, 0xffff")
    for i in range(4):
        A(f"v_add_f32 v{16+i}, v{16+i}, v{20+i}")
    A("s_mov_b64 exec, -1")
    treduce(16, 17, 18, 19)
    A("v_add_f32_dpp v16, v16, v16 row_ror:4 row_mask:0xf bank_mask:0xf")
    A("v_add_f32_dpp v16, v16, v16 row_ror:8 row_mask:0xf bank_mask:0xf")
    A("s_waitcnt lgkmcnt(0)")
    A("v_fmac_f32 v164, v166, v16")
    A("v_cvt_pk_bf16_f32 v164, v164, v164")
    A("v_lshlrev_b32 v11, 1, v10")
    A("s_mul_i32 s31, s4, 896")
    A("s_mov_b32 exec_lo, 0x000f000f")
    A("s_mov_b32 exec_hi, 0x000f000f")
    A("buffer_store_short v164, v11, s[24:27], s31 offen")
    A("s_or_b32 s30, s4, s5")
    A("s_cmp_lg_u32 s30, 0")
    A("s_cbranch_scc1 L_noepoch")
    A("s_mov_b64 exec, 1")
    A("v_mov_b32 v16, s58")
    A(f"v_mov_b32 v17, {EPOCH}")
    A("buffer_store_dword v16, v17, s[16:19], 0 offen sc1")
    A("L_noepoch:")
    A("s_mov_b64 exec, -1")
    STAMP(12)
    A("L_fin:")
    if stamps:
        STAMP(15)
        A("v_mov_b32 v16, 0")
        for i in range(16):
            A(f"v_writelane_b32 v16, s{64+2*i}, {i}")
        A("s_lshl_b32 s30, s2, 3")
        A("s_add_u32 s30, s30, s3")
        A("s_lshl_b32 s30, s30, 6")
        A(f"s_add_u32 s30, s30, {STAMPS}")
        A("v_lshlrev_b32 v17, 2, v1")
        A("s_mov_b64 exec, 0xffff")
        A("buffer_store_dword v16, v17, s[16:19], s30 offen")
    A("L_exit:")
    A("s_endpgm")
    body = A.text()
    out = HDR
    out += f"; @launch grid=(256,1,1) block=(512,1,1) lds={LDS_BYTES}\n"
    out += '.amdgcn_target "amdgcn-amd-amdhsa--gfx950"\n.text\n'
    out += f".globl {NAME}_kernel\n.p2align 8\n.type {NAME}_kernel,@function\n"
    out += body
    out += f""".section .rodata,"a"
.p2align 6
.amdhsa_kernel {NAME}_kernel
  .amdhsa_next_free_vgpr 192
  .amdhsa_next_free_sgpr 100
  .amdhsa_accum_offset 192
  .amdhsa_group_segment_fixed_size 0
  .amdhsa_kernarg_size 104
  .amdhsa_user_sgpr_count 2
  .amdhsa_user_sgpr_kernarg_segment_ptr 1
  .amdhsa_system_sgpr_workgroup_id_x 1
.end_amdhsa_kernel
"""
    return out


if __name__ == "__main__":
    open("k1.s", "w").write(gen(False))
    open("k1_st.s", "w").write(gen(True))
```

```python
import sys
from asmlib import Asm
NAME = "adaLN_cond__sliding_block_cached__dense_activation_silu__decode"

EPOCH = 0
G_MOD = 0x1000
G_Q = 0x8000
S0 = 0x10000
P3 = 0x10000
L3 = 0x50000
P4 = 0x51000
P5 = 0x58000
STAMPS = 0x100000
WT = 0
W2T = 57344
XV = 114688
QL = 118272
X2F = 119424
ACT = 121216
RED = 121344
OST = 123392
OC = 123520
LDS_BYTES = 140288
SPIN = 1 << 16

HDR = open("cdna_kernels/" + NAME + ".s.ref").read().split("; Override launch")[0]


def gen(stamps=False):
    A = Asm()
    nst = [0]

    def STAMP(i):
        if stamps:
            A(f"s_memrealtime s[{64+2*i}:{65+2*i}]")
            A("s_waitcnt lgkmcnt(0)")

    def srd(d, p, size):
        A(f"s_mov_b32 s{d}, s{p}")
        A(f"s_mov_b32 s{d+1}, s{p+1}")
        A(f"s_mov_b32 s{d+2}, {size}")
        A(f"s_mov_b32 s{d+3}, 0x20000")

    A(f"{NAME}_kernel:")
    A("s_cmp_ge_u32 s2, 256")
    A("s_cbranch_scc1 L_exit")
    A("s_load_dwordx16 s[32:47], s[0:1], 0")
    A("s_load_dwordx8 s[48:55], s[0:1], 64")
    A("s_load_dwordx2 s[56:57], s[0:1], 96")
    if stamps:
        for i in range(16):
            A(f"s_mov_b32 s{64+2*i}, 0")
    A("v_and_b32 v1, 63, v0")
    A("v_lshrrev_b32 v14, 6, v0")
    A("v_and_b32 v2, 15, v0")
    A("v_readfirstlane_b32 s3, v14")
    A("v_lshrrev_b32 v3, 4, v1")
    A("v_lshlrev_b32 v4, 9, v2")
    A("v_lshl_add_u32 v4, v3, 4, v4")
    A("v_lshlrev_b32 v5, 11, v3")
    A("v_lshl_add_u32 v5, v2, 4, v5")
    A("v_lshlrev_b32 v6, 3, v0")
    A("s_and_b32 s4, s2, 15")
    A("s_lshr_b32 s5, s2, 4")
    A("s_lshl_b32 s6, s4, 13")
    A("s_lshl_b32 s7, s5, 7")
    A("s_add_u32 s6, s6, s7")
    A("s_lshl_b32 s7, s3, 4")
    A("s_add_u32 s6, s6, s7")
    A("s_add_u32 s6, s6, 6144")
    A("s_lshl_b32 s6, s6, 9")
    A("v_lshrrev_b32 v8, 3, v1")
    A("v_and_b32 v7, 7, v1")
    A("v_and_b32 v14, 1, v3")
    A("v_lshlrev_b32 v14, 1, v14")
    A("v_xor_b32 v7, v7, v14")
    A("v_lshlrev_b32 v7, 4, v7")
    A("v_lshrrev_b32 v15, 2, v2")
    A("v_lshl_add_u32 v9, v3, 3, v15")
    A("v_lshlrev_b32 v9, 7, v9")
    A("v_lshrrev_b32 v15, 1, v15")
    A("v_or_b32 v15, v15, v14")
    A("v_lshl_add_u32 v9, v15, 5, v9")
    A("v_and_b32 v15, 3, v2")
    A("v_lshl_add_u32 v9, v15, 3, v9")
    A("v_mul_u32_u24 v13, 896, v15")
    A("v_lshl_add_u32 v13, v3, 4, v13")
    A(f"v_add_u32 v13, {XV}, v13")
    A("s_waitcnt lgkmcnt(0)")
    A(f"s_load_dword s59, s[56:57], {EPOCH}")
    STAMP(0)
    srd(8, 34, 0x4000000)
    srd(12, 36, 0x4000000)
    srd(16, 56, 0x10000000)
    A("s_cmp_lt_u32 s2, 42")
    A("s_cbranch_scc1 L_front_mod")
    A("s_cmp_lt_u32 s2, 48")
    A("s_cbranch_scc1 L_att")
    A("s_cmp_lt_u32 s2, 112")
    A("s_cbranch_scc1 L_front_q")
    A("s_branch L_att")

    def dma_coop(n_per_wave, lds_base):
        A("s_and_b32 s62, s3, 1")
        A("s_lshl_b32 s62, s62, 6")
        A("v_xor_b32 v14, s62, v7")
        A("v_mul_lo_u32 v15, v8, s60")
        A("v_add_u32 v14, v14, v15")
        A("s_lshl_b32 s62, s3, 3")
        A("s_mul_i32 s62, s62, s60")
        A("s_add_u32 s62, s62, s61")
        A("s_lshl_b32 s63, s60, 6")
        A("s_lshl_b32 s30, s3, 10")
        A(f"s_add_u32 m0, s30, {lds_base}")
        for i in range(n_per_wave):
            A("buffer_load_dwordx4 v14, s[20:23], s62 offen nt lds")
            if i != n_per_wave - 1:
                A("s_add_u32 s62, s62, s63")
                A("s_add_u32 m0, m0, 8192")

    def dma_own(srdn, lds_sgpr):
        A("v_mul_lo_u32 v15, v8, s60")
        A("v_add_u32 v14, v7, v15")
        A("v_xor_b32 v15, 64, v7")
        A("v_mul_lo_u32 v10, v8, s60")
        A("v_add_u32 v15, v15, v10")
        A("s_lshl_b32 s63, s60, 3")
        A(f"s_mov_b32 m0, {lds_sgpr}")
        for i in range(8):
            A(f"buffer_load_dwordx4 v{14 if i%2==0 else 15}, s[{srdn}:{srdn+3}], s61 offen nt lds")
            if i != 7:
                A("s_add_u32 s61, s61, s63")
                A("s_add_u32 m0, m0, 1024")

    def mk_tag():
        A("s_mul_i32 s58, s59, 0x9E3779B1")
        A("s_add_u32 s58, s58, 0x7F4A7C15")

    def bload448(breg):
        A("s_lshl_b32 s30, s3, 5")
        A("v_xor_b32 v10, s30, v9")
        for ks in range(14):
            A(f"ds_read_b64_tr_b16 v[{breg+4*ks}:{breg+4*ks+1}], v10 offset:{WT+ks*4096}")
            A(f"ds_read_b64_tr_b16 v[{breg+4*ks+2}:{breg+4*ks+3}], v10 offset:{WT+ks*4096+512}")

    def aload448(areg):
        for ks in range(14):
            A(f"ds_read_b128 v[{areg+4*ks}:{areg+4*ks+3}], v13 offset:{ks*64}")

    def mfma448(breg, areg, acc, extra_lgkm=0, fill=None):
        for ks in range(14):
            A(f"s_waitcnt lgkmcnt({min(15, 13-ks+extra_lgkm)})")
            c = "0" if ks == 0 else f"v[{acc}:{acc+3}]"
            A(f"v_mfma_f32_16x16x32_bf16 v[{acc}:{acc+3}], v[{areg+4*ks}:{areg+4*ks+3}], v[{breg+4*ks}:{breg+4*ks+3}], {c}")
            if fill is not None:
                fill(ks)

    BREG, AREG, ACC = 16, 104, 160

    A("L_front_mod:")
    srd(24, 48, 1792)
    A("v_lshlrev_b32 v10, 2, v0")
    A("buffer_load_dword v11, v10, s[24:27], 0 offen")
    srd(20, 50, 448 * 5376)
    A("s_movk_i32 s60, 5376")
    A("s_lshl_b32 s61, s2, 7")
    dma_coop(7, WT)
    A(f"s_lshl_b32 s31, s2, 9")
    A(f"s_add_u32 s31, s31, {G_MOD}")
    A("s_waitcnt vmcnt(7)")
    A("v_lshlrev_b32 v16, 16, v11")
    A("v_and_b32 v17, 0xffff0000, v11")
    A("v_mul_f32 v18, 0xbfb8aa3b, v16")
    A("v_mul_f32 v19, 0xbfb8aa3b, v17")
    A("v_exp_f32 v18, v18")
    A("v_exp_f32 v19, v19")
    A("v_add_f32 v18, 1.0, v18")
    A("v_add_f32 v19, 1.0, v19")
    A("v_rcp_f32 v18, v18")
    A("v_rcp_f32 v19, v19")
    A("v_mul_f32 v16, v16, v18")
    A("v_mul_f32 v17, v17, v19")
    A("v_cvt_pk_bf16_f32 v16, v16, v17")
    A(f"v_add_u32 v10, {XV}, v10")
    A("ds_write_b32 v10, v16")
    A("s_cmp_ge_u32 s2, 14")
    A("s_cbranch_scc1 L_noprefill")
    A("v_mov_b32 v20, -1")
    A("v_mov_b32 v21, -1")
    A("v_mov_b32 v22, -1")
    A("v_mov_b32 v23, -1")
    A("v_lshlrev_b32 v12, 4, v0")
    A("s_lshl_b32 s62, s2, 15")
    A(f"s_add_u32 s62, s62, {S0}")
    for i in range(4):
        A("buffer_store_dwordx4 v[20:23], v12, s[16:19], s62 offen sc1")
        if i != 3:
            A("s_add_u32 s62, s62, 8192")
    A("L_noprefill:")
    A("s_waitcnt vmcnt(0) lgkmcnt(0)")
    mk_tag()
    A("s_barrier")
    STAMP(1)
    A("s_cmp_ge_u32 s3, 4")
    A("s_cbranch_scc1 L_front_done")
    bload448(BREG)
    A("s_branch L_front_gemv")

    A("L_front_q:")
    srd(24, 32, 1792)
    A("v_lshlrev_b32 v10, 4, v1")
    A("v_lshlrev_b32 v11, 1, v0")
    A("v_mov_b32 v12, 0x10000")
    A("v_cmp_gt_u32 vcc, 56, v1")
    A("v_cndmask_b32 v10, v12, v10, vcc")
    A("buffer_load_dwordx4 v[16:19], v10, s[24:27], 0 offen")
    A("buffer_load_dwordx4 v[20:23], v10, s[24:27], 0 offen offset:896")
    A("buffer_load_ushort v24, v11, s[24:27], 0 offen")
    A("buffer_load_ushort v25, v11, s[24:27], 0 offen offset:896")
    srd(20, 38, 448 * 8192)
    A("s_movk_i32 s60, 8192")
    A("s_sub_u32 s61, s2, 48")
    A("s_lshl_b32 s31, s61, 9")
    A(f"s_add_u32 s31, s31, {G_Q}")
    A("s_lshl_b32 s61, s61, 7")
    dma_coop(7, WT)
    A("s_waitcnt vmcnt(7)")

    def wave_sum(r, t):
        for sh in (1, 2, 4, 8):
            A(f"v_add_f32_dpp v{r}, v{r}, v{r} row_ror:{sh} row_mask:0xf bank_mask:0xf")
        A(f"v_mov_b32 v{t}, v{r}")
        A(f"v_permlane16_swap_b32 v{t}, v{r}")
        A(f"v_add_f32 v{r}, v{r}, v{t}")
        A(f"v_mov_b32 v{t}, v{r}")
        A(f"v_permlane32_swap_b32 v{t}, v{r}")
        A(f"v_add_f32 v{r}, v{r}, v{t}")

    for b in range(2):
        for i in range(4):
            A(f"v_lshlrev_b32 v{32+8*b+2*i}, 16, v{16+4*b+i}")
            A(f"v_and_b32 v{33+8*b+2*i}, 0xffff0000, v{16+4*b+i}")
    for b in range(2):
        base = 32 + 8 * b
        A(f"v_add_f32 v{48+b}, v{base}, v{base+1}")
        for i in range(2, 8):
            A(f"v_add_f32 v{48+b}, v{48+b}, v{base+i}")
    wave_sum(48, 50)
    wave_sum(49, 51)
    A("v_mul_f32 v48, 0x3b124925, v48")
    A("v_mul_f32 v49, 0x3b124925, v49")
    for b in range(2):
        base = 32 + 8 * b
        for i in range(8):
            A(f"v_sub_f32 v{base+i}, v{base+i}, v{48+b}")
        A(f"v_mul_f32 v{52+b}, v{base}, v{base}")
        for i in range(1, 8):
            A(f"v_fmac_f32 v{52+b}, v{base+i}, v{base+i}")
        A(f"v_cndmask_b32 v{52+b}, 0, v{52+b}, vcc")
    wave_sum(52, 50)
    wave_sum(53, 51)
    A("v_mov_b32 v54, 0x3727c5ac")
    A("v_fmac_f32 v54, 0x3b124925, v52")
    A("v_mov_b32 v55, 0x3727c5ac")
    A("v_fmac_f32 v55, 0x3b124925, v53")
    A("v_rsq_f32 v54, v54")
    A("v_rsq_f32 v55, v55")
    A("v_lshlrev_b32 v24, 16, v24")
    A("v_lshlrev_b32 v25, 16, v25")
    A("v_sub_f32 v24, v24, v48")
    A("v_sub_f32 v25, v25, v49")
    A("v_mul_f32 v100, v24, v54")
    A("v_mul_f32 v101, v25, v55")
    A("s_waitcnt vmcnt(0) lgkmcnt(0)")
    mk_tag()
    A("s_barrier")
    STAMP(1)
    A("s_cmp_ge_u32 s3, 4")
    A("s_cbranch_scc1 L_q_nob")
    bload448(BREG)
    A("L_q_nob:")
    A("s_cmp_ge_u32 s3, 7")
    A("s_cbranch_scc1 L_q_bar")
    A(f"s_mov_b32 s30, {SPIN}")
    A(f"s_movk_i32 s62, {G_MOD}")
    A("L_q_poll:")
    A("buffer_load_dwordx2 v[96:97], v6, s[16:19], s62 offen sc1")
    A("buffer_load_dwordx2 v[98:99], v6, s[16:19], s62 offen offset:3584 sc1")
    A("s_sub_u32 s30, s30, 1")
    A("s_cbranch_scc1 L_q_got")
    A("s_waitcnt vmcnt(0)")
    A("v_cmp_ne_u32 vcc, s58, v97")
    A("v_cmp_ne_u32 s[28:29], s58, v99")
    A("s_or_b64 vcc, vcc, s[28:29]")
    A("s_cbranch_scc1 L_q_poll")
    A("L_q_got:")
    A("s_waitcnt vmcnt(0)")
    STAMP(2)
    A("v_lshlrev_b32 v102, 16, v98")
    A("v_and_b32 v103, 0xffff0000, v98")
    A("v_add_f32 v102, 1.0, v102")
    A("v_add_f32 v103, 1.0, v103")
    A("v_lshlrev_b32 v98, 16, v96")
    A("v_and_b32 v99, 0xffff0000, v96")
    A("v_fmac_f32 v98, v100, v102")
    A("v_fmac_f32 v99, v101, v103")
    A("v_cvt_pk_bf16_f32 v98, v98, v99")
    A(f"v_add_u32 v11, {XV}, v11")
    A("ds_write_b16 v11, v98")
    A("ds_write_b16_d16_hi v11, v98 offset:896")
    A("L_q_bar:")
    A("s_waitcnt lgkmcnt(0)")
    A("s_barrier")
    A("s_cmp_ge_u32 s3, 4")
    A("s_cbranch_scc1 L_front_done")

    A("L_front_gemv:")
    aload448(AREG)
    mfma448(BREG, AREG, ACC)
    A("s_lshl_b32 s30, s3, 7")
    A("s_add_u32 s31, s31, s30")
    A("v_lshlrev_b32 v10, 3, v1")
    A("s_mov_b64 exec, 0xffff")
    A(f"v_cvt_pk_bf16_f32 v{ACC}, v{ACC}, v{ACC+1}")
    A(f"v_mov_b32 v{ACC+1}, s58")
    A(f"buffer_store_dwordx2 v[{ACC}:{ACC+1}], v10, s[16:19], s31 offen sc1")
    A("s_mov_b64 exec, -1")
    A("L_front_done:")
    A("s_barrier")
    STAMP(3)

    KR, VR, QR = 16, 48, 80
    SA, OA, MK, PA = 112, 116, 124, 128
    A("L_att:")
    for i in range(8):
        A(f"buffer_load_dwordx4 v[{KR+4*i}:{KR+4*i+3}], v4, s[8:11], s6 offen offset:{i*64} nt")
    A("s_and_b32 s7, s4, 7")
    A("s_lshl_b32 s7, s7, 12")
    A(f"s_add_u32 s7, s7, {G_Q}")
    A("buffer_load_dwordx2 v[136:137], v6, s[16:19], s7 offen sc1")
    for r in range(4):
        for dh in range(2):
            i = r * 2 + dh
            A(f"buffer_load_dwordx4 v[{VR+4*i}:{VR+4*i+3}], v5, s[12:15], s6 offen offset:{r*512+dh*256} nt")
    A("v_and_b32 v14, 7, v2")
    A("v_and_b32 v15, 1, v14")
    A("v_lshlrev_b32 v15, 4, v15")
    A("v_mov_b32 v10, 0xffff")
    A("v_lshlrev_b32 v10, v15, v10")
    A("v_lshrrev_b32 v14, 1, v14")
    for k in range(4):
        A(f"v_cmp_eq_u32 vcc, {k}, v14")
        A(f"v_cndmask_b32 v{MK+k}, 0, v10, vcc")
    A("v_lshrrev_b32 v14, 8, v0")
    A("v_mul_u32_u24 v14, 576, v14")
    A("v_and_b32 v15, 255, v0")
    A("v_lshl_add_u32 v14, v15, 1, v14")
    A(f"v_add_u32 v138, {QL}, v14")
    A("v_lshrrev_b32 v14, 3, v2")
    A("v_mul_u32_u24 v14, 576, v14")
    A("v_lshl_add_u32 v14, v3, 4, v14")
    A(f"v_add_u32 v139, {QL}, v14")
    A("s_lshr_b32 s62, s4, 3")
    A("s_lshl_b32 s62, s62, 4")
    A("s_waitcnt lgkmcnt(0)")
    mk_tag()
    A(f"s_mov_b32 s30, {SPIN}")
    A("s_waitcnt vmcnt(8)")
    STAMP(4)
    A("v_cmp_ne_u32 vcc, s58, v137")
    A("s_cbranch_vccz L_att_got")
    A("L_att_poll:")
    A("buffer_load_dwordx2 v[136:137], v6, s[16:19], s7 offen sc1")
    A("s_sub_u32 s30, s30, 1")
    A("s_cbranch_scc1 L_att_to")
    A("s_waitcnt vmcnt(0)")
    A("v_cmp_ne_u32 vcc, s58, v137")
    A("s_cbranch_vccnz L_att_poll")
    A("L_att_to:")
    A("s_waitcnt vmcnt(0)")
    A("L_att_got:")
    A("v_lshrrev_b32 v136, s62, v136")
    A("ds_write_b16 v138, v136")
    A("s_waitcnt lgkmcnt(0)")
    A("s_barrier")
    STAMP(5)
    for i in range(8):
        A(f"ds_read_b128 v[{QR+4*i}:{QR+4*i+3}], v139 offset:{i*64}")
    for i in range(8):
        A(f"s_waitcnt lgkmcnt({7-i})")
        c = "0" if i == 0 else f"v[{SA}:{SA+3}]"
        A(f"v_mfma_f32_16x16x32_bf16 v[{SA}:{SA+3}], v[{KR+4*i}:{KR+4*i+3}], v[{QR+4*i}:{QR+4*i+3}], {c}")
    A("s_mov_b32 s63, 0x3db8aa3b")
    A("v_lshrrev_b32 v14, 1, v3")
    A("v_lshlrev_b32 v14, 10, v14")
    A("v_lshl_add_u32 v14, v2, 5, v14")
    A("v_and_b32 v15, 1, v3")
    A("v_lshl_add_u32 v14, v15, 4, v14")
    A("s_lshl_b32 s30, s3, 11")
    A(f"s_add_u32 s30, s30, {OC}")
    A("v_add_u32 v140, s30, v14")
    A(f"v_max3_f32 v141, v{SA}, v{SA+1}, v{SA+2}")
    A(f"v_max_f32 v141, v141, v{SA+3}")
    A("v_mov_b32 v142, v141")
    A("v_permlane32_swap_b32 v142, v141")
    A("v_max_f32 v141, v141, v142")
    A("v_mov_b32 v142, v141")
    A("v_permlane16_swap_b32 v142, v141")
    A("v_max_f32 v141, v141, v142")
    A("v_mul_f32 v141, s63, v141")
    for r in range(4):
        A(f"v_fma_f32 v{SA+r}, v{SA+r}, s63, -v141")
    for r in range(4):
        A(f"v_exp_f32 v{SA+r}, v{SA+r}")
    A(f"v_add_f32 v142, v{SA}, v{SA+1}")
    A(f"v_add_f32 v143, v{SA+2}, v{SA+3}")
    for r in range(4):
        A(f"v_cvt_pk_bf16_f32 v{144+r}, v{SA+r}, v{SA+r}")
    A("v_add_f32 v142, v142, v143")
    for r in range(4):
        pa = PA + 4 * (r % 2)
        for k in range(4):
            A(f"v_and_b32 v{pa+k}, v{144+r}, v{MK+k}")
        if r == 0:
            A("v_mov_b32 v143, v142")
            A("v_permlane32_swap_b32 v143, v142")
            A("v_add_f32 v142, v142, v143")
            A("v_mov_b32 v143, v142")
            A("v_permlane16_swap_b32 v143, v142")
            A("v_add_f32 v142, v142, v143")
        A(f"s_waitcnt vmcnt({6-2*r})")
        for dh in range(2):
            i = r * 2 + dh
            c = "0" if r == 0 else f"v[{OA+4*dh}:{OA+4*dh+3}]"
            A(f"v_mfma_f32_16x16x32_bf16 v[{OA+4*dh}:{OA+4*dh+3}], v[{pa}:{pa+3}], v[{VR+4*i}:{VR+4*i+3}], {c}")
    STAMP(6)
    A("v_lshrrev_b32 v14, 3, v2")
    A("v_lshlrev_b32 v14, 6, v14")
    A("s_lshl_b32 s30, s3, 2")
    A(f"s_add_u32 s30, s30, {OST}")
    A("v_add_u32 v14, s30, v14")
    A("s_mov_b64 exec, 0x101")
    A("ds_write2_b32 v14, v141, v142 offset0:0 offset1:8")
    A("s_mov_b64 exec, -1")
    A(f"ds_write_b128 v140, v[{OA}:{OA+3}]")
    A(f"ds_write_b128 v140, v[{OA+4}:{OA+7}] offset:512")
    A(f"v_add_u32 v10, {OC}, v6")
    A("v_lshrrev_b32 v11, 7, v0")
    A("v_lshlrev_b32 v11, 6, v11")
    A(f"v_add_u32 v12, {OST}, v11")
    A("s_waitcnt lgkmcnt(0)")
    A("s_barrier")
    A("s_cmp_ge_u32 s3, 4")
    A("s_cbranch_scc1 L_tail")
    for i in range(4):
        A(f"ds_read_b128 v[{16+4*i}:{19+4*i}], v12 offset:{16*i}")
    for w in range(8):
        A(f"ds_read_b64 v[{32+2*w}:{33+2*w}], v10 offset:{w*2048}")
    A("v_lshrrev_b32 v14, 5, v0")
    A("v_lshlrev_b32 v14, 11, v14")
    A("v_and_b32 v15, 31, v0")
    A("v_lshl_add_u32 v14, v15, 2, v14")
    A("s_lshl_b32 s30, s4, 14")
    A("s_lshl_b32 s31, s5, 7")
    A("s_add_u32 s30, s30, s31")
    A(f"s_add_u32 s30, s30, {P3}")
    A("s_lshl_b32 s31, s4, 7")
    A("s_lshl2_add_u32 s31, s5, s31")
    A(f"s_add_u32 s31, s31, {L3}")
    A("s_waitcnt lgkmcnt(10)")
    A("v_max3_f32 v48, v16, v17, v18")
    A("v_max3_f32 v49, v19, v20, v21")
    A("v_max3_f32 v48, v48, v22, v23")
    A("v_max_f32 v48, v48, v49")
    for w in range(8):
        A(f"v_sub_f32 v{16+w}, v{16+w}, v48")
    for w in range(8):
        A(f"v_exp_f32 v{16+w}, v{16+w}")
    A("s_waitcnt lgkmcnt(8)")
    A("v_mul_f32 v49, v16, v24")
    for w in range(1, 8):
        A(f"v_fmac_f32 v49, v{16+w}, v{24+w}")
    A("v_rcp_f32 v50, v49")
    A("v_log_f32 v51, v49")
    A("s_waitcnt lgkmcnt(0)")
    A("v_mul_f32 v52, v16, v32")
    A("v_mul_f32 v53, v16, v33")
    for w in range(1, 8):
        A(f"v_fmac_f32 v52, v{16+w}, v{32+2*w}")
        A(f"v_fmac_f32 v53, v{16+w}, v{33+2*w}")
    A("v_mul_f32 v52, v52, v50")
    A("v_mul_f32 v53, v53, v50")
    A("v_cvt_pk_bf16_f32 v52, v52, v53")
    A("v_min_u32 v52, -2, v52")
    A("buffer_store_dword v52, v14, s[16:19], s30 offen sc1")
    A("v_add_f32 v51, v51, v48")
    A("v_min_u32 v51, -2, v51")
    A("s_bitcmp1_b32 s3, 0")
    A("s_cbranch_scc1 L_tail")
    A("s_mov_b64 exec, 1")
    A("buffer_store_dword v51, v11, s[16:19], s31 offen sc1")
    A("s_mov_b64 exec, -1")

    A("L_tail:")
    STAMP(7)
    A("s_barrier")
    A("s_cmp_lt_u32 s2, 16")
    A("s_cbranch_scc1 L_fin")
    A("s_cmp_lt_u32 s2, 48")
    A("s_cbranch_scc1 L_mlp_lo")
    A("s_cmp_lt_u32 s2, 112")
    A("s_cbranch_scc1 L_fin")
    A("s_cmp_ge_u32 s2, 224")
    A("s_cbranch_scc1 L_mlp_hi")

    A("s_sub_u32 s30, s2, 112")
    A("s_lshr_b32 s31, s30, 4")
    A("s_lshl_b32 s31, s31, 3")
    A("s_and_b32 s62, s30, 7")
    A("s_add_u32 s31, s31, s62")
    A("s_lshr_b32 s30, s30, 3")
    A("s_and_b32 s30, s30, 1")
    A("s_mul_i32 s62, s31, 37")
    A("s_lshr_b32 s62, s62, 8")
    A("s_mul_i32 s63, s62, 7")
    A("s_sub_u32 s31, s31, s63")
    A("s_lshl3_add_u32 s4, s30, s62")
    A("s_mov_b32 s5, s31")
    srd(20, 40, 4096 * 896)
    A("s_movk_i32 s60, 896")
    A("s_lshl_b32 s61, s62, 3")
    A("s_add_u32 s61, s61, s3")
    A("s_mul_i32 s61, s61, 57344")
    A("s_lshl_b32 s63, s5, 7")
    A("s_add_u32 s61, s61, s63")
    A("s_lshl_b32 s7, s3, 13")
    dma_own(20, "s7")
    A("v_lshlrev_b32 v10, 7, v2")
    A("v_lshl_add_u32 v10, v3, 4, v10")
    A("v_lshlrev_b32 v11, 4, v3")
    A("s_lshl_b32 s30, s4, 14")
    A("s_lshl_b32 s31, s3, 11")
    A("s_add_u32 s30, s30, s31")
    A(f"s_add_u32 s30, s30, {P3}")
    A("s_lshl_b32 s31, s4, 7")
    A("s_lshr_b32 s62, s3, 2")
    A("s_lshl_b32 s62, s62, 6")
    A("s_add_u32 s31, s31, s62")
    A(f"s_add_u32 s31, s31, {L3}")
    A("v_add_u32 v12, s7, v9")
    A("v_xor_b32 v13, 32, v12")
    A("v_xor_b32 v14, 64, v12")
    A("v_xor_b32 v15, 0x60, v12")
    A("s_waitcnt vmcnt(0)")
    STAMP(8)
    for ks in range(2):
        for nt in range(4):
            r = 16 + (ks * 4 + nt) * 4
            A(f"ds_read_b64_tr_b16 v[{r}:{r+1}], v{12+nt} offset:{ks*4096}")
            A(f"ds_read_b64_tr_b16 v[{r+2}:{r+3}], v{12+nt} offset:{ks*4096+512}")
    A(f"s_mov_b32 s62, {SPIN}")
    A("L_wo_poll:")
    A("buffer_load_dwordx4 v[48:51], v10, s[16:19], s30 offen sc1")
    A("buffer_load_dwordx4 v[52:55], v10, s[16:19], s30 offen offset:64 sc1")
    A("buffer_load_dwordx4 v[56:59], v11, s[16:19], s31 offen sc1")
    A("s_waitcnt vmcnt(0)")
    A("v_max3_u32 v60, v48, v49, v50")
    A("v_max3_u32 v61, v51, v52, v53")
    A("v_max3_u32 v60, v60, v54, v55")
    A("v_max3_u32 v61, v61, v56, v57")
    A("v_max3_u32 v60, v60, v58, v59")
    A("v_max_u32 v60, v60, v61")
    A("v_cmp_eq_u32 vcc, -1, v60")
    A("s_sub_u32 s62, s62, 1")
    A("s_cbranch_scc1 L_wo_got")
    A("s_and_b64 exec, exec, vcc")
    A("s_cbranch_execnz L_wo_poll")
    A("L_wo_got:")
    A("s_mov_b64 exec, -1")
    STAMP(9)
    A("s_waitcnt lgkmcnt(0)")
    for ks in range(2):
        for nt in range(4):
            r = 16 + (ks * 4 + nt) * 4
            c = "0" if ks == 0 else f"v[{64+4*nt}:{67+4*nt}]"
            A(f"v_mfma_f32_16x16x32_bf16 v[{64+4*nt}:{67+4*nt}], v[{48+4*ks}:{51+4*ks}], v[{r}:{r+3}], {c}")
    A("v_max3_f32 v60, v56, v57, v58")
    A("v_max_f32 v60, v60, v59")
    A("v_mov_b32 v61, v60")
    A("v_permlane32_swap_b32 v61, v60")
    A("v_max_f32 v60, v60, v61")
    A("v_mov_b32 v61, v60")
    A("v_permlane16_swap_b32 v61, v60")
    A("v_max_f32 v60, v60, v61")
    for r in range(4):
        A(f"v_sub_f32 v{56+r}, v{56+r}, v60")
    for r in range(4):
        A(f"v_exp_f32 v{56+r}, v{56+r}")
    A("v_add_f32 v60, v56, v57")
    A("v_add_f32 v61, v58, v59")
    A("v_add_f32 v60, v60, v61")
    A("v_mov_b32 v61, v60")
    A("v_permlane32_swap_b32 v61, v60")
    A("v_add_f32 v60, v60, v61")
    A("v_mov_b32 v61, v60")
    A("v_permlane16_swap_b32 v61, v60")
    A("v_add_f32 v60, v60, v61")
    A("v_rcp_f32 v60, v60")
    for nt in range(4):
        A(f"v_mul_f32 v{80+nt}, v56, v{64+4*nt}")
    for r in range(1, 4):
        for nt in range(4):
            A(f"v_fmac_f32 v{80+nt}, v{56+r}, v{64+4*nt+r}")

    def treduce(r0, r1, r2, r3):
        A(f"v_permlane32_swap_b32 v{r0}, v{r2}")
        A(f"v_permlane32_swap_b32 v{r1}, v{r3}")
        A(f"v_add_f32 v{r0}, v{r0}, v{r2}")
        A(f"v_add_f32 v{r1}, v{r1}, v{r3}")
        A(f"v_permlane16_swap_b32 v{r0}, v{r1}")
        A(f"v_add_f32 v{r0}, v{r0}, v{r1}")

    treduce(80, 81, 82, 83)
    A("v_mul_f32 v80, v80, v60")
    A("v_lshlrev_b32 v10, 2, v0")
    A(f"v_add_u32 v10, {RED}, v10")
    A("ds_write_b32 v10, v80")
    A("s_waitcnt lgkmcnt(0)")
    A("s_barrier")
    A("s_cmp_lg_u32 s3, 0")
    A("s_cbranch_scc1 L_fin")
    for i in range(4):
        A(f"ds_read2st64_b32 v[{16+2*i}:{17+2*i}], v10 offset0:{2*i} offset1:{2*i+1}")
    A("s_mul_i32 s30, s4, 1792")
    A("s_lshl_b32 s31, s5, 8")
    A("s_add_u32 s30, s30, s31")
    A(f"s_add_u32 s30, s30, {P4}")
    A("v_lshlrev_b32 v11, 2, v1")
    A("s_waitcnt lgkmcnt(0)")
    A("v_add_f32 v16, v16, v17")
    A("v_add_f32 v18, v18, v19")
    A("v_add_f32 v20, v20, v21")
    A("v_add_f32 v22, v22, v23")
    A("v_add_f32 v16, v16, v18")
    A("v_add_f32 v20, v20, v22")
    A("v_add_f32 v16, v16, v20")
    A("v_min_u32 v16, -2, v16")
    A("buffer_store_dword v16, v11, s[16:19], s30 offen sc1")
    STAMP(10)
    A("s_branch L_fin")

    A("L_mlp_lo:")
    A("s_sub_u32 s30, s2, 16")
    A("s_branch L_mlp")
    A("L_mlp_hi:")
    A("s_sub_u32 s30, s2, 192")
    A("L_mlp:")
    A("s_lshr_b32 s31, s30, 4")
    A("s_lshl_b32 s31, s31, 3")
    A("s_and_b32 s62, s30, 7")
    A("s_add_u32 s5, s31, s62")
    A("s_lshr_b32 s4, s30, 3")
    A("s_and_b32 s4, s4, 1")
    A("s_cmp_ge_u32 s5, 28")
    A("s_cbranch_scc1 L_fin")
    srd(24, 32, 1792)
    A("v_lshlrev_b32 v11, 1, v0")
    A("s_mul_i32 s30, s4, 896")
    A("buffer_load_ushort v164, v11, s[24:27], s30 offen")
    srd(20, 44, 448 * 3584)
    A("s_movk_i32 s60, 3584")
    A("s_lshl_b32 s61, s5, 7")
    dma_coop(7, WT)
    srd(24, 46, 1792 * 896)
    A("s_cmp_ge_u32 s3, 7")
    A("s_cbranch_scc1 L_mlp_w7")
    A("s_movk_i32 s60, 896")
    A("s_mul_i32 s61, s5, 57344")
    A("s_lshl_b32 s63, s3, 7")
    A("s_add_u32 s61, s61, s63")
    A("s_lshl_b32 s7, s3, 13")
    A(f"s_add_u32 s7, s7, {W2T}")
    dma_own(24, "s7")
    A(f"s_mov_b32 s30, {SPIN}")
    A(f"s_movk_i32 s62, {G_MOD+896*8}")
    A(f"s_movk_i32 s63, {G_MOD+1792*8}")
    A("L_mlp_mpoll:")
    A("buffer_load_dwordx2 v[166:167], v6, s[16:19], s62 offen sc1")
    A("buffer_load_dwordx2 v[168:169], v6, s[16:19], s62 offen offset:3584 sc1")
    A("buffer_load_dwordx2 v[170:171], v6, s[16:19], s63 offen sc1")
    A("s_sub_u32 s30, s30, 1")
    A("s_cbranch_scc1 L_mlp_mgot")
    A("s_waitcnt vmcnt(0)")
    A("v_cmp_ne_u32 vcc, s58, v167")
    A("v_cmp_ne_u32 s[28:29], s58, v169")
    A("s_or_b64 vcc, vcc, s[28:29]")
    A("v_cmp_ne_u32 s[28:29], s58, v171")
    A("s_or_b64 vcc, vcc, s[28:29]")
    A("s_cbranch_scc1 L_mlp_mpoll")
    A("L_mlp_mgot:")
    A("s_waitcnt vmcnt(0)")
    A("s_lshl_b32 s62, s4, 4")
    A("v_lshrrev_b32 v166, s62, v166")
    A("v_lshrrev_b32 v168, s62, v168")
    A("v_lshrrev_b32 v170, s62, v170")
    A("v_lshlrev_b32 v166, 16, v166")
    A("v_lshlrev_b32 v170, 16, v170")
    A("v_add_f32 v170, 1.0, v170")
    A("v_cvt_pk_bf16_f32 v170, v170, v170")
    A(f"v_add_u32 v165, {XV}, v11")
    A("ds_write_b16 v165, v170 offset:896")
    A("ds_write_b16 v165, v168 offset:1792")
    A("v_and_b32 v170, 0xffff0000, v170")
    A("v_lshlrev_b32 v164, 16, v164")
    A("s_branch L_mlp_join")
    A("L_mlp_w7:")
    A("v_and_b32 v10, 3, v2")
    A("v_lshl_add_u32 v10, v10, 2, v3")
    A("s_lshl_b32 s30, s5, 4")
    A("v_add_u32 v10, s30, v10")
    A("v_lshlrev_b32 v12, 3, v10")
    A(f"s_mov_b32 s30, {SPIN}")
    A(f"s_movk_i32 s62, {G_MOD+2240*8}")
    A("L_mlp_gpoll:")
    A("buffer_load_dwordx2 v[166:167], v12, s[16:19], s62 offen sc1")
    A("s_sub_u32 s30, s30, 1")
    A("s_cbranch_scc1 L_mlp_ggot")
    A("s_waitcnt vmcnt(0)")
    A("v_cmp_ne_u32 vcc, s58, v167")
    A("s_cbranch_vccnz L_mlp_gpoll")
    A("L_mlp_ggot:")
    A("s_waitcnt vmcnt(0)")
    A("s_lshl_b32 s62, s4, 4")
    A("v_lshrrev_b32 v166, s62, v166")
    A("v_lshlrev_b32 v166, 16, v166")
    A("L_mlp_join:")
    A("s_waitcnt vmcnt(0) lgkmcnt(0)")
    A("s_barrier")
    STAMP(8)
    A("s_cmp_ge_u32 s3, 7")
    A("s_cbranch_scc1 L_mlp_bar1")
    A("s_cmp_ge_u32 s3, 4")
    A("s_cbranch_scc1 L_mlp_now1")
    bload448(BREG)
    A("L_mlp_now1:")
    A("v_add_u32 v172, s7, v9")
    A("v_xor_b32 v173, 32, v172")
    A("v_xor_b32 v174, 64, v172")
    A("v_xor_b32 v175, 0x60, v172")
    for ks in range(2):
        for nt in range(4):
            r = 72 + (ks * 4 + nt) * 4
            A(f"ds_read_b64_tr_b16 v[{r}:{r+1}], v{172+nt} offset:{ks*4096}")
            A(f"ds_read_b64_tr_b16 v[{r+2}:{r+3}], v{172+nt} offset:{ks*4096+512}")
    A("v_lshlrev_b32 v10, 2, v0")
    A("s_mul_i32 s30, s4, 14336")
    A(f"s_add_u32 s30, s30, {P4}")
    A("s_add_u32 s31, s30, 5376")
    A("s_add_u32 s63, s30, 10752")
    A(f"s_mov_b32 s62, {SPIN}")
    A("L_mlp_poll:")
    for k in range(8):
        so = ("s30", "s31", "s63")[k // 3]
        A(f"buffer_load_dword v{176+k}, v10, s[16:19], {so} offen offset:{(k%3)*1792} sc1")
    A("s_waitcnt vmcnt(0)")
    A("v_max3_u32 v184, v176, v177, v178")
    A("v_max3_u32 v185, v179, v180, v181")
    A("v_max3_u32 v184, v184, v182, v183")
    A("v_max_u32 v184, v184, v185")
    A("v_cmp_eq_u32 vcc, -1, v184")
    A("s_sub_u32 s62, s62, 1")
    A("s_cbranch_scc1 L_mlp_got")
    A("s_and_b64 exec, exec, vcc")
    A("s_cbranch_execnz L_mlp_poll")
    A("L_mlp_got:")
    A("s_mov_b64 exec, -1")
    STAMP(9)
    A("v_add_f32 v176, v176, v177")
    A("v_add_f32 v178, v178, v179")
    A("v_add_f32 v180, v180, v181")
    A("v_add_f32 v182, v182, v183")
    A("v_add_f32 v176, v176, v178")
    A("v_add_f32 v180, v180, v182")
    A("v_add_f32 v176, v176, v180")
    A("v_fmac_f32 v164, v166, v176")
    A("v_mul_f32 v177, v164, v170")
    A("v_cvt_pk_bf16_f32 v177, v177, v177")
    A(f"v_add_u32 v10, {X2F}, v10")
    A("ds_write_b16 v165, v177")
    A("ds_write_b32 v10, v164")
    A("L_mlp_bar1:")
    A("s_waitcnt lgkmcnt(0)")
    A("s_barrier")
    A("s_cmp_ge_u32 s3, 4")
    A("s_cbranch_scc1 L_mlp_bar2")
    A("v_lshlrev_b32 v10, 2, v1")
    A(f"v_add_u32 v10, {X2F}, v10")
    for i in range(3):
        A(f"ds_read2st64_b32 v[{176+2*i}:{177+2*i}], v10 offset0:{2*i} offset1:{2*i+1}")
    A("ds_read_b32 v182, v10 offset:1536")
    aload448(AREG)
    stat = []
    stat.append(["v_add_f32 v184, v176, v177", "v_mul_f32 v185, v176, v176"])
    stat.append(["v_add_f32 v184, v184, v178", "v_fmac_f32 v185, v177, v177"])
    stat.append(["v_add_f32 v184, v184, v179", "v_fmac_f32 v185, v178, v178"])
    stat.append(["v_add_f32 v184, v184, v180", "v_fmac_f32 v185, v179, v179"])
    stat.append(["v_add_f32 v184, v184, v181", "v_fmac_f32 v185, v180, v180"])
    stat.append(["v_add_f32 v184, v184, v182", "v_fmac_f32 v185, v181, v181", "v_fmac_f32 v185, v182, v182"])
    stat.append(["v_permlane32_swap_b32 v184, v185", "v_add_f32 v184, v184, v185"])
    stat.append(["v_mov_b32 v185, v184", "v_permlane16_swap_b32 v185, v184", "v_add_f32 v184, v184, v185"])
    stat.append(["v_add_f32_dpp v184, v184, v184 row_ror:1 row_mask:0xf bank_mask:0xf"])
    stat.append(["v_add_f32_dpp v184, v184, v184 row_ror:2 row_mask:0xf bank_mask:0xf"])
    stat.append(["v_add_f32_dpp v184, v184, v184 row_ror:4 row_mask:0xf bank_mask:0xf"])
    stat.append(["v_add_f32_dpp v184, v184, v184 row_ror:8 row_mask:0xf bank_mask:0xf"])
    stat.append(["v_mul_f32 v184, 0x3b124925, v184", "v_mov_b32 v185, v184", "v_permlane32_swap_b32 v184, v185"])
    stat.append(["v_fma_f32 v185, -v184, v184, v185", "v_add_f32 v185, 0x3727c5ac, v185", "v_rsq_f32 v185, v185"])

    def fill(ks):
        for s in stat[ks]:
            A(s)
    mfma448(BREG, AREG, ACC, fill=fill)
    A("s_lshl_b32 s30, s3, 5")
    A(f"s_add_u32 s30, s30, {ACT}")
    A("v_lshlrev_b32 v10, 1, v2")
    A("v_add_u32 v10, s30, v10")
    A(f"v_fma_f32 v{ACC}, -v184, v{ACC+1}, v{ACC}")
    A(f"v_fma_f32 v{ACC}, v185, v{ACC}, v{ACC+2}")
    A(f"v_mul_f32 v186, 0xbfb8aa3b, v{ACC}")
    A("v_exp_f32 v186, v186")
    A("v_add_f32 v186, 1.0, v186")
    A("v_rcp_f32 v186, v186")
    A(f"v_mul_f32 v186, v186, v{ACC}")
    A("v_cvt_pk_bf16_f32 v186, v186, v186")
    A("s_mov_b64 exec, 0xffff")
    A("ds_write_b16 v10, v186")
    A("s_mov_b64 exec, -1")
    A("L_mlp_bar2:")
    A("s_waitcnt lgkmcnt(0)")
    A("s_barrier")
    STAMP(10)
    A("s_cmp_ge_u32 s3, 7")
    A("s_cbranch_scc1 L_final")
    A("v_lshlrev_b32 v10, 4, v3")
    A(f"v_add_u32 v10, {ACT}, v10")
    A("ds_read_b128 v[104:107], v10")
    A("ds_read_b128 v[108:111], v10 offset:64")
    A("s_mul_i32 s30, s4, 28")
    A("s_add_u32 s30, s30, s5")
    A("s_mul_i32 s30, s30, 1792")
    A(f"s_add_u32 s30, s30, {P5}")
    A("v_lshlrev_b32 v11, 2, v0")
    A("v_cmp_eq_u32 s[28:29], 1, v3")
    A("v_cmp_eq_u32 s[62:63], 2, v3")
    A("v_cmp_eq_u32 vcc, 3, v3")
    for ks in range(2):
        A(f"s_waitcnt lgkmcnt({1-ks})")
        for nt in range(4):
            r = 72 + (ks * 4 + nt) * 4
            c = "0" if ks == 0 else f"v[{112+4*nt}:{115+4*nt}]"
            A(f"v_mfma_f32_16x16x32_bf16 v[{112+4*nt}:{115+4*nt}], v[{104+4*ks}:{107+4*ks}], v[{r}:{r+3}], {c}")
    A("v_cndmask_b32 v112, v112, v116, s[28:29]")
    A("v_cndmask_b32 v112, v112, v120, s[62:63]")
    A("v_cndmask_b32 v112, v112, v124, vcc")
    A("v_min_u32 v112, -2, v112")
    A("buffer_store_dword v112, v11, s[16:19], s30 offen sc1")
    STAMP(11)
    A("s_branch L_fin")

    A("L_final:")
    A("v_lshlrev_b32 v11, 2, v10")
    A(f"v_add_u32 v11, {X2F}, v11")
    A("ds_read_b32 v164, v11")
    A("v_lshrrev_b32 v12, 2, v1")
    A("s_mul_i32 s30, s4, 28")
    A("v_add_u32 v12, s30, v12")
    A("v_add_u32 v13, 16, v12")
    A("v_subrev_u32 v14, 56, v13")
    A("v_cmp_le_u32 vcc, 56, v13")
    A("v_cndmask_b32 v13, v13, v14, vcc")
    A("v_and_b32 v14, 3, v1")
    A("v_lshlrev_b32 v14, 4, v14")
    A("v_mul_u32_u24 v12, 1792, v12")
    A("v_mul_u32_u24 v13, 1792, v13")
    A("v_add_u32 v12, v12, v14")
    A("v_add_u32 v13, v13, v14")
    A("s_lshl_b32 s30, s5, 6")
    A(f"s_add_u32 s30, s30, {P5}")
    srd(24, 52, 1792)
    A(f"s_mov_b32 s62, {SPIN}")
    A("L_fin_poll:")
    A("buffer_load_dwordx4 v[16:19], v12, s[16:19], s30 offen sc1")
    A("buffer_load_dwordx4 v[20:23], v13, s[16:19], s30 offen sc1")
    A("s_waitcnt vmcnt(0)")
    A("v_max3_u32 v24, v16, v17, v18")
    A("v_max3_u32 v25, v19, v20, v21")
    A("v_max3_u32 v24, v24, v22, v23")
    A("v_max_u32 v24, v24, v25")
    A("v_cmp_eq_u32 vcc, -1, v24")
    A("s_sub_u32 s62, s62, 1")
    A("s_cbranch_scc1 L_fin_got")
    A("s_and_b64 exec, exec, vcc")
    A("s_cbranch_execnz L_fin_poll")
    A("L_fin_got:")
    STAMP(11)
    A("s_mov_b32 exec_lo, -1")
    A("s_mov_b32 exec_hi, 0xffff")
    for i in range(4):
        A(f"v_add_f32 v{16+i}, v{16+i}, v{20+i}")
    A("s_mov_b64 exec, -1")
    treduce(16, 17, 18, 19)
    A("v_add_f32_dpp v16, v16, v16 row_ror:4 row_mask:0xf bank_mask:0xf")
    A("v_add_f32_dpp v16, v16, v16 row_ror:8 row_mask:0xf bank_mask:0xf")
    A("s_waitcnt lgkmcnt(0)")
    A("v_fmac_f32 v164, v166, v16")
    A("v_cvt_pk_bf16_f32 v164, v164, v164")
    A("v_lshlrev_b32 v11, 1, v10")
    A("s_mul_i32 s31, s4, 896")
    A("s_mov_b32 exec_lo, 0x000f000f")
    A("s_mov_b32 exec_hi, 0x000f000f")
    A("buffer_store_short v164, v11, s[24:27], s31 offen")
    A("s_or_b32 s30, s4, s5")
    A("s_cmp_lg_u32 s30, 0")
    A("s_cbranch_scc1 L_noepoch")
    A("s_mov_b64 exec, 1")
    A("v_mov_b32 v16, s58")
    A(f"v_mov_b32 v17, {EPOCH}")
    A("buffer_store_dword v16, v17, s[16:19], 0 offen sc1")
    A("L_noepoch:")
    A("s_mov_b64 exec, -1")
    STAMP(12)
    A("L_fin:")
    if stamps:
        STAMP(15)
        A("v_mov_b32 v16, 0")
        for i in range(16):
            A(f"v_writelane_b32 v16, s{64+2*i}, {i}")
        A("s_lshl_b32 s30, s2, 3")
        A("s_add_u32 s30, s30, s3")
        A("s_lshl_b32 s30, s30, 6")
        A(f"s_add_u32 s30, s30, {STAMPS}")
        A("v_lshlrev_b32 v17, 2, v1")
        A("s_mov_b64 exec, 0xffff")
        A("buffer_store_dword v16, v17, s[16:19], s30 offen")
        if stamps == "dbg":
            srd(24, 54, 256)
            A("s_not_b32 s30, s64")
            A("v_writelane_b32 v16, s30, 0")
            A("buffer_atomic_umax v16, v17, s[24:27], 0 offen sc1")
    A("L_exit:")
    A("s_endpgm")
    body = A.text()
    out = HDR
    out += f"; @launch grid=(256,1,1) block=(512,1,1) lds={LDS_BYTES}\n"
    out += '.amdgcn_target "amdgcn-amd-amdhsa--gfx950"\n.text\n'
    out += f".globl {NAME}_kernel\n.p2align 8\n.type {NAME}_kernel,@function\n"
    out += body
    out += f""".section .rodata,"a"
.p2align 6
.amdhsa_kernel {NAME}_kernel
  .amdhsa_next_free_vgpr 192
  .amdhsa_next_free_sgpr 100
  .amdhsa_accum_offset 192
  .amdhsa_group_segment_fixed_size 0
  .amdhsa_kernarg_size 104
  .amdhsa_user_sgpr_count 2
  .amdhsa_user_sgpr_kernarg_segment_ptr 1
  .amdhsa_system_sgpr_workgroup_id_x 1
.end_amdhsa_kernel
"""
    return out


if __name__ == "__main__":
    open("k1.s", "w").write(gen(False))
    open("k1_st.s", "w").write(gen(True))
    open("k1_dbg.s", "w").write(gen("dbg"))
```

```python
import sys
from asmlib import Asm
NAME = "adaLN_cond__sliding_block_cached__dense_activation_silu__decode"

EPOCH = 0
G_MOD = 0x1000
G_X = 0x7000
G_Q = 0x8000
NS = 10
NA = 16 * NS
P3 = 0x10000
P3K = 24576
L3O = 16 * NS * 128
P4 = 0x40000
P5 = 0x48000
P5L = 0x64000
STAMPS = 0x100000
WT = 0
W2T = 57344
XS = 928
XV = 114688
X2F = XV + 8 * XS
GBF = X2F + 3584
ACT = GBF + 3584
RED = ACT + 512
LDS_END = RED + 4096
OC = 0
QL = 32768
HS = 640
ML = QL + 1280
FQ = ML + 512
CH = FQ + 64
LDS_BYTES = 135168
assert LDS_END <= LDS_BYTES
SPIN = 1 << 16
TAG, EP = "s96", "s97"

HDR = open("cdna_kernels/" + NAME + ".s.ref").read().split("; Override launch")[0]


def gen(stamps=False, local5=True, MX=0, PD=1, W=16, HO=None, qfirst=False):
    A = Asm()

    def STAMP(i):
        if stamps:
            A("s_memrealtime s[98:99]")
            A("s_waitcnt lgkmcnt(0)")
            A(f"v_writelane_b32 v127, s98, {i}")

    def srd(d, p, size):
        A(f"s_mov_b32 s{d}, s{p}")
        A(f"s_mov_b32 s{d+1}, s{p+1}")
        A(f"s_mov_b32 s{d+2}, {size}")
        A(f"s_mov_b32 s{d+3}, 0x20000")

    def mk_tag():
        A(f"s_mul_i32 {TAG}, {EP}, 0x9E3779B1")
        A(f"s_add_u32 {TAG}, {TAG}, 0x7F4A7C15")

    def swap_red(op, r, t, which):
        A(f"v_mov_b32 v{t}, v{r}")
        A(f"v_permlane{which}_swap_b32 v{t}, v{r}")
        A(f"{op} v{r}, v{r}, v{t}")

    def wave_sum(r, t):
        for sh in (1, 2, 4, 8):
            A(f"v_add_f32_dpp v{r}, v{r}, v{r} row_ror:{sh} row_mask:0xf bank_mask:0xf")
        swap_red("v_add_f32", r, t, 16)
        swap_red("v_add_f32", r, t, 32)

    def head_red(op, r, t):
        A(f"{op}_dpp v{r}, v{r}, v{r} quad_perm:[1,0,3,2] row_mask:0xf bank_mask:0xf")
        A(f"{op}_dpp v{r}, v{r}, v{r} quad_perm:[2,3,0,1] row_mask:0xf bank_mask:0xf")
        A(f"{op}_dpp v{r}, v{r}, v{r} row_half_mirror row_mask:0xf bank_mask:0xf")
        swap_red(op, r, t, 16)
        swap_red(op, r, t, 32)

    def treduce(r0, r1, r2, r3):
        A(f"v_permlane32_swap_b32 v{r0}, v{r2}")
        A(f"v_permlane32_swap_b32 v{r1}, v{r3}")
        A(f"v_add_f32 v{r0}, v{r0}, v{r2}")
        A(f"v_add_f32 v{r1}, v{r1}, v{r3}")
        A(f"v_permlane16_swap_b32 v{r0}, v{r1}")
        A(f"v_add_f32 v{r0}, v{r0}, v{r1}")

    def flag_wait(addr_v, off, name, tmp):
        A(f"s_mov_b32 s30, {SPIN*8}")
        A(f"L_{name}:")
        A("s_sleep 1")
        A(f"ds_read_b32 v{tmp}, v{addr_v} offset:{off}")
        A("s_sub_u32 s30, s30, 1")
        A(f"s_cbranch_scc1 L_{name}_x")
        A("s_waitcnt lgkmcnt(0)")
        A(f"v_cmp_ne_u32 vcc, 1, v{tmp}")
        A(f"s_cbranch_vccnz L_{name}")
        A(f"L_{name}_x:")

    A(f"{NAME}_kernel:")
    A("s_load_dwordx16 s[32:47], s[0:1], 0")
    A("s_load_dwordx8 s[48:55], s[0:1], 64")
    A("s_load_dwordx2 s[56:57], s[0:1], 96")
    if stamps:
        A("s_memrealtime s[98:99]")
        A("v_mov_b32 v127, 0")
    A("s_cmp_ge_u32 s2, 256")
    A("s_cbranch_scc1 L_exit")
    A("v_lshrrev_b32 v14, 6, v0")
    A("v_and_b32 v1, 63, v0")
    A("v_and_b32 v2, 15, v0")
    A("v_readfirstlane_b32 s3, v14")
    A("v_lshrrev_b32 v3, 4, v1")
    A("s_and_b32 s4, s2, 7")
    A(f"s_xor_b32 s4, s4, {7-MX}")
    A("s_lshr_b32 s5, s2, 3")
    A("s_mul_i32 s6, s5, 7")
    A("s_add_u32 s6, s6, s4")
    A("s_mov_b32 s18, 0x10000000")
    A("s_mov_b32 s19, 0x20000")
    A("s_cmp_eq_u32 s4, 7")
    A("s_cbranch_scc1 L_m")
    if qfirst:
        A(f"s_add_u32 s6, s6, {NA}")
        A("s_cmp_lt_u32 s6, 224")
        A("s_cbranch_scc1 L_ft")
        A("s_sub_u32 s6, s6, 224")
    else:
        A(f"s_cmp_ge_u32 s6, {NA}")
        A("s_cbranch_scc1 L_ft")

    KR, VR = 16, 48
    A("s_and_b32 s4, s6, 15")
    A("s_cmp_ge_u32 s3, 13")
    A("s_cbranch_scc1 L_exit")
    A("s_lshl_b32 s30, s3, 4")
    A(f"s_add_u32 s30, s30, {ML+8}")
    A("v_lshlrev_b32 v12, 8, v1")
    A("v_add_u32 v12, s30, v12")
    A("s_lshl_b32 s30, s3, 2")
    A(f"s_add_u32 s30, s30, {FQ}")
    A("v_mov_b32 v6, s30")
    A("v_mov_b32 v13, 0")
    A("s_mov_b64 exec, 3")
    A("ds_write_b32 v12, v13")
    A("ds_write2_b32 v6, v13, v13 offset0:0 offset1:16")
    A("s_mov_b64 exec, -1")
    A("s_lshr_b32 s5, s6, 4")
    A("s_mul_i32 s7, s5, 13")
    A("s_max_u32 s6, s5, 8")
    A("s_sub_u32 s7, s7, s6")
    A("s_add_u32 s7, s7, s3")
    A("s_lshl_b32 s7, s7, 4")
    A("s_lshl_b32 s6, s4, 13")
    A("s_add_u32 s6, s6, s7")
    A(f"s_add_u32 s6, s6, {6144+128}")
    A("s_lshl_b32 s6, s6, 9")
    A("s_add_u32 s7, s6, 4096")
    A("s_mov_b32 s10, 0x4000000")
    A("s_mov_b32 s11, 0x20000")
    A("s_mov_b32 s14, 0x4000000")
    A("s_mov_b32 s15, 0x20000")
    A("v_lshrrev_b32 v4, 1, v2")
    A("v_lshlrev_b32 v4, 9, v4")
    A("v_and_b32 v5, 1, v2")
    A("v_lshl_add_u32 v4, v5, 6, v4")
    A("v_lshl_add_u32 v4, v3, 4, v4")
    A("v_lshlrev_b32 v5, 10, v3")
    A("v_lshl_add_u32 v5, v2, 4, v5")
    A("s_waitcnt lgkmcnt(0)")
    A("s_barrier")
    A("s_lshr_b32 s30, s5, 3")
    A("s_add_u32 s30, s30, s3")
    A("s_cmp_ge_u32 s30, 13")
    A("s_cbranch_scc1 L_a_null")
    A("s_mov_b32 s8, s34")
    A("s_mov_b32 s9, s35")
    A("s_mov_b32 s12, s36")
    A("s_mov_b32 s13, s37")
    if W < 16 or HO is not None:
        A("s_cmp_lt_u32 s3, 4")
        A("s_cbranch_scc1 L_ch_x")
        flag_wait(6, CH - FQ - 16, "ch", 13)
    A(f"s_load_dword {EP}, s[56:57], {EPOCH}")
    n = 0
    for hf in range(2):
        for i in range(4):
            r = KR + 16 * hf + 4 * i
            if n >= W:
                A(f"s_waitcnt vmcnt({W-1})")
            A(f"buffer_load_dwordx4 v[{r}:{r+3}], v4, s[8:11], {('s6','s7')[hf]} offen offset:{i*128} nt")
            n += 1
    for k in range(4):
        for dh in range(2):
            r = VR + 8 * k + 4 * dh
            if n >= W:
                A(f"s_waitcnt vmcnt({W-1})")
            A(f"buffer_load_dwordx4 v[{r}:{r+3}], v5, s[12:15], {('s6','s7')[k//2]} offen offset:{(k%2)*512+dh*256} nt")
            n += 1
    if W < 16 or HO is not None:
        A(f"s_waitcnt vmcnt({W//2 if HO is None else HO})")
        A("v_mov_b32 v13, 1")
        A("s_mov_b64 exec, 1")
        A(f"ds_write_b32 v6, v13 offset:{CH-FQ}")
        A("s_mov_b64 exec, -1")
    if stamps:
        A("v_writelane_b32 v127, s98, 14")
    STAMP(0)
    A("s_mov_b32 s16, s56")
    A("s_mov_b32 s17, s57")
    A("v_lshrrev_b32 v13, 3, v2")
    A(f"v_mul_u32_u24 v9, {HS}, v13")
    A("v_bfe_u32 v14, v2, 2, 1")
    A("v_lshl_add_u32 v9, v14, 6, v9")
    A("v_lshl_add_u32 v9, v3, 4, v9")
    A(f"v_add_u32 v9, {QL}, v9")
    A("v_lshlrev_b32 v12, 8, v13")
    A("s_lshl_b32 s30, s3, 4")
    A(f"s_add_u32 s30, s30, {ML}")
    A("v_add_u32 v12, s30, v12")
    A("v_and_b32 v7, 7, v1")
    A("v_lshlrev_b32 v7, 2, v7")
    A(f"v_add_u32 v7, {FQ}, v7")
    A("s_lshl_b32 s30, s3, 11")
    A("v_lshlrev_b32 v4, 4, v1")
    A("v_add_u32 v4, s30, v4")
    A("v_and_b32 v14, 7, v2")
    A("v_and_b32 v15, 1, v14")
    A("v_lshlrev_b32 v15, 4, v15")
    A("v_mov_b32 v124, 0xffff")
    A("v_lshlrev_b32 v124, v15, v124")
    A("v_lshrrev_b32 v14, 1, v14")
    for k in range(4):
        A(f"v_cmp_eq_u32 vcc, {k}, v14")
        A(f"v_cndmask_b32 v{120+k}, 0, v124, vcc")
    A("s_mov_b32 s27, 0x3db8aa3b")
    A("s_cmp_ge_u32 s3, 8")
    A("s_cbranch_scc1 L_a_wq")
    A("s_waitcnt lgkmcnt(0)")
    mk_tag()
    A(f"v_mov_b32 v125, {TAG}")
    A("s_lshl_b32 s26, s4, 11")
    A("s_lshl_b32 s30, s3, 8")
    A("s_add_u32 s26, s26, s30")
    A(f"s_add_u32 s26, s26, {G_Q}")
    A("s_add_u32 s28, s56, s26")
    A("s_addc_u32 s29, s57, 0")
    A("s_lshr_b32 s30, s3, 2")
    A(f"s_mul_i32 s30, s30, {HS}")
    A("s_and_b32 s31, s3, 3")
    A("s_lshl_b32 s31, s31, 7")
    A("s_add_u32 s30, s30, s31")
    A(f"s_add_u32 s30, s30, {QL}")
    A("v_lshlrev_b32 v8, 2, v1")
    A("v_add_u32 v8, s30, v8")
    A(f"s_mov_b32 s31, {SPIN}")
    A("L_kq_poll:")
    for i in range(4):
        A(f"s_load_dwordx16 s[{32+16*i}:{47+16*i}], s[28:29], {64*i} glc")
    A("s_sub_u32 s31, s31, 1")
    A("s_cbranch_scc1 L_kq_go")
    A("s_waitcnt lgkmcnt(0)")
    for i in range(4):
        A(f"s_cmp_lg_u32 s{47+16*i}, {TAG}")
        A("s_cbranch_scc1 L_kq_poll")
    A("L_kq_go:")
    A("s_waitcnt lgkmcnt(0)")
    for i in range(32):
        A(f"v_writelane_b32 v124, s{32+2*i}, {i}")
        A(f"v_writelane_b32 v125, s{33+2*i}, {i}")
    A(f"v_cmp_ne_u32 vcc, {TAG}, v125")
    A("s_cmp_le_i32 s31, 0")
    A("s_cbranch_scc1 L_kq_ok")
    A("s_cbranch_vccnz L_kq_poll")
    A("L_kq_ok:")
    A("s_mov_b32 exec_hi, 0")
    A("ds_write_b32 v8, v124")
    A("s_mov_b64 exec, 1")
    A("v_mov_b32 v125, 1")
    A("ds_write_b32 v6, v125")
    A("s_mov_b64 exec, -1")
    STAMP(4)
    A("L_a_wq:")
    flag_wait(7, 0, "kq_fw", 124)
    STAMP(5)
    for i in range(4):
        A(f"ds_read_b128 v[{80+4*i}:{83+4*i}], v9 offset:{i*128}")
    A("s_waitcnt vmcnt(8)")
    for i in range(4):
        A(f"s_waitcnt lgkmcnt({3-i})")
        for hf in range(2):
            r = KR + 16 * hf + 4 * i
            c = "0" if i == 0 else f"v[{96+4*hf}:{99+4*hf}]"
            A(f"v_mfma_f32_16x16x32_bf16 v[{96+4*hf}:{99+4*hf}], v[{r}:{r+3}], v[{80+4*i}:{83+4*i}], {c}")
    for k in range(4):
        a = 96 + 2 * k
        A(f"v_add_f32_dpp v{104+k}, v{a+1}, v{a} row_shl:4 row_mask:0xf bank_mask:0x5")
    for k in range(4):
        a = 96 + 2 * k
        A(f"v_add_f32_dpp v{104+k}, v{a}, v{a+1} row_shr:4 row_mask:0xf bank_mask:0xa")
    A("v_max3_f32 v108, v104, v105, v106")
    A("v_max_f32 v108, v108, v107")
    swap_red("v_max_f32", 108, 109, 32)
    swap_red("v_max_f32", 108, 109, 16)
    A("v_mul_f32 v108, s27, v108")
    for k in range(4):
        A(f"v_fma_f32 v{104+k}, v{104+k}, s27, -v108")
    for k in range(4):
        A(f"v_exp_f32 v{104+k}, v{104+k}")
    A("v_add_f32 v109, v104, v105")
    A("v_add_f32 v110, v106, v107")
    for k in range(4):
        A(f"v_cvt_pk_bf16_f32 v{104+k}, v{104+k}, v{104+k}")
    A("v_add_f32 v109, v109, v110")
    swap_red("v_add_f32", 109, 110, 32)
    swap_red("v_add_f32", 109, 110, 16)
    A("v_mov_b32 v110, 1")
    A("s_mov_b64 exec, 0x101")
    A("ds_write_b96 v12, v[108:110]")
    A("s_mov_b64 exec, -1")
    for k in range(4):
        for j in range(4):
            A(f"v_and_b32 v{16+4*k+j}, v{104+k}, v{120+j}")
        A(f"s_waitcnt vmcnt({6-2*k})")
        for dh in range(2):
            r = VR + 8 * k + 4 * dh
            c = "0" if k == 0 else f"v[{112+4*dh}:{115+4*dh}]"
            A(f"v_mfma_f32_16x16x32_bf16 v[{112+4*dh}:{115+4*dh}], v[{16+4*k}:{19+4*k}], v[{r}:{r+3}], {c}")
    STAMP(7)
    A("ds_write_b128 v4, v[112:115]")
    A("ds_write_b128 v4, v[116:119] offset:1024")
    A("s_cmp_lt_u32 s3, 4")
    A("s_cbranch_scc1 L_a_comb")
    A("s_waitcnt lgkmcnt(0)")
    A("s_barrier")
    A("s_branch L_fin")
    A("L_a_null:")
    A("v_lshlrev_b32 v4, 4, v1")
    A("v_mov_b32 v16, 0")
    A("v_mov_b32 v17, 0")
    A("v_mov_b32 v18, 0")
    A("v_mov_b32 v19, 0")
    A(f"ds_write_b128 v4, v[16:19] offset:{12*2048}")
    A(f"ds_write_b128 v4, v[16:19] offset:{12*2048+1024}")
    A("v_mov_b32 v20, 0xff7fffff")
    A("v_mov_b32 v21, 0")
    A("v_mov_b32 v22, 1")
    A("v_subrev_u32 v12, 8, v12")
    A("s_mov_b64 exec, 3")
    A("ds_write_b96 v12, v[20:22]")
    A("s_waitcnt lgkmcnt(0)")
    A("s_branch L_exit")
    A("L_a_comb:")
    A("v_bfe_u32 v14, v0, 6, 1")
    A("v_lshlrev_b32 v14, 8, v14")
    A("v_min_u32 v11, 12, v2")
    A("v_lshl_add_u32 v11, v11, 4, v14")
    A(f"v_add_u32 v11, {ML}, v11")
    A("v_cmp_gt_u32 s[20:21], 13, v2")
    A("v_and_b32 v15, 128, v0")
    A("v_add_u32 v14, v14, v15")
    A("v_bfe_u32 v15, v0, 1, 4")
    A("v_lshl_add_u32 v14, v15, 3, v14")
    A("v_bfe_u32 v15, v0, 5, 1")
    A("v_lshl_add_u32 v14, v15, 2, v14")
    A("v_and_b32 v15, 1, v0")
    A("v_lshl_add_u32 v14, v15, 1, v14")
    A("v_lshrrev_b32 v15, 6, v14")
    A(f"v_mul_u32_u24 v15, {2*NS*128}, v15")
    A("v_and_b32 v14, 63, v14")
    A("v_lshl_add_u32 v8, v14, 1, v15")
    A("v_lshlrev_b32 v9, 3, v0")
    A("s_and_b32 s60, s4, 7")
    A("s_lshr_b32 s61, s4, 3")
    A(f"s_mul_i32 s61, s61, {NS}")
    A("s_add_u32 s61, s61, s5")
    A("s_lshl_b32 s61, s61, 7")
    A(f"s_mul_i32 s28, s60, {P3K}")
    A("s_add_u32 s28, s28, s61")
    A(f"s_add_u32 s28, s28, {P3}")
    A("s_lshl2_add_u32 s29, s3, s28")
    A(f"s_add_u32 s29, s29, {L3O}")
    A("v_mov_b32 v13, 0")
    A(f"s_mov_b32 s30, {SPIN*8}")
    A("L_ml_fw:")
    A("s_sleep 1")
    A("ds_read_b96 v[80:82], v11")
    A("s_sub_u32 s30, s30, 1")
    A("s_cbranch_scc1 L_ml_fw_x")
    A("s_waitcnt lgkmcnt(0)")
    A("v_cmp_ne_u32 vcc, 1, v82")
    A("s_cbranch_vccnz L_ml_fw")
    A("L_ml_fw_x:")
    STAMP(9)
    A("v_mov_b32 v83, v80")
    for sh in (1, 2, 4, 8):
        A(f"v_max_f32_dpp v83, v83, v83 row_ror:{sh} row_mask:0xf bank_mask:0xf")
    A("v_sub_f32 v80, v80, v83")
    A("v_exp_f32 v80, v80")
    A("v_mul_f32 v81, v81, v80")
    A("v_cndmask_b32 v81, 0, v81, s[20:21]")
    for sh in (1, 2, 4, 8):
        A(f"v_add_f32_dpp v81, v81, v81 row_ror:{sh} row_mask:0xf bank_mask:0xf")
    A("v_rcp_f32 v82, v81")
    A("v_log_f32 v81, v81")
    A("v_mul_f32 v80, v80, v82")
    A("v_add_f32 v81, v81, v83")
    A("v_min_u32 v81, -2, v81")
    A("s_cmp_ge_u32 s3, 2")
    A("s_cbranch_scc1 L_a_nolse")
    A("s_mov_b64 exec, 1")
    A("buffer_store_dword v81, v13, s[16:19], s29 offen sc1")
    A("s_mov_b64 exec, -1")
    A("L_a_nolse:")
    for w in range(13):
        A(f"v_readlane_b32 s{32+2*w}, v80, {w}")
    A("s_waitcnt lgkmcnt(0)")
    A("s_barrier")
    for i in range(6):
        A(f"ds_read2st64_b64 v[{16+4*i}:{19+4*i}], v9 offset0:{8*i} offset1:{8*i+4}")
    A(f"ds_read_b64 v[40:41], v9 offset:{12*2048}")
    for i in range(7):
        A(f"s_waitcnt lgkmcnt({6-i})")
        for j in range(2):
            w = 2 * i + j
            if w > 12:
                continue
            a = 16 + 4 * i + 2 * j
            acc = 80 + 2 * j
            if i == 0:
                A(f"v_pk_mul_f32 v[{acc}:{acc+1}], v[{a}:{a+1}], s[{32+2*w}:{33+2*w}] op_sel_hi:[1,0]")
            else:
                A(f"v_pk_fma_f32 v[{acc}:{acc+1}], v[{a}:{a+1}], s[{32+2*w}:{33+2*w}], v[{acc}:{acc+1}] op_sel_hi:[1,0,1]")
    A("v_pk_add_f32 v[80:81], v[80:81], v[82:83]")
    A("v_cvt_pk_bf16_f32 v16, v80, v81")
    A("v_min_u32 v16, -2, v16")
    A("buffer_store_dword v16, v8, s[16:19], s28 offen sc1")
    STAMP(8)
    A("s_branch L_fin")

    def ft_addr():
        A("v_lshrrev_b32 v8, 3, v1")
        A("v_and_b32 v7, 7, v1")
        A("v_and_b32 v14, 1, v3")
        A("v_lshlrev_b32 v14, 1, v14")
        A("v_xor_b32 v7, v7, v14")
        A("v_lshlrev_b32 v7, 4, v7")
        A("v_lshrrev_b32 v15, 2, v2")
        A("v_lshl_add_u32 v9, v3, 3, v15")
        A("v_lshlrev_b32 v9, 7, v9")
        A("v_lshrrev_b32 v15, 1, v15")
        A("v_or_b32 v15, v15, v14")
        A("v_lshl_add_u32 v9, v15, 5, v9")
        A("v_and_b32 v15, 3, v2")
        A("v_lshl_add_u32 v9, v15, 3, v9")
        A("v_and_b32 v15, 1, v2")
        A(f"v_mul_u32_u24 v13, {XS}, v15")
        A("v_lshl_add_u32 v13, v3, 4, v13")
        A(f"v_add_u32 v13, {XV}, v13")

    def xv_addr():
        A("v_lshlrev_b32 v12, 2, v0")
        A(f"v_add_u32 v10, {XV}, v12")
        A(f"v_add_u32 v11, {XV+XS-896}, v12")
        A("v_cmp_gt_u32 vcc, 224, v0")
        A("v_cndmask_b32 v10, v11, v10, vcc")

    def dma_coop(nw, lds_base, tag):
        A("s_and_b32 s62, s3, 1")
        A("s_lshl_b32 s62, s62, 6")
        A("v_xor_b32 v14, s62, v7")
        A("v_mul_lo_u32 v15, v8, s60")
        A("v_add_u32 v14, v14, v15")
        A("s_lshl_b32 s62, s3, 3")
        A("s_mul_i32 s62, s62, s60")
        A("s_add_u32 s62, s62, s61")
        A(f"s_mul_i32 s63, s60, {8*nw}")
        A("s_lshl_b32 s30, s3, 10")
        A(f"s_add_u32 m0, s30, {lds_base}")
        n = (56 + nw - 1) // nw
        for i in range(n):
            if (i + 1) * nw > 56:
                A(f"s_cmp_ge_u32 s3, {56 - i*nw}")
                A(f"s_cbranch_scc1 L_dma_{tag}")
            A("buffer_load_dwordx4 v14, s[20:23], s62 offen nt lds")
            if i != n - 1:
                A("s_add_u32 s62, s62, s63")
                A(f"s_add_u32 m0, m0, {1024*nw}")
        A(f"L_dma_{tag}:")

    def dma_own(srdn, lds_sgpr, n=8):
        A("v_mul_lo_u32 v10, v8, s60")
        A("v_add_u32 v14, v7, v10")
        A("v_xor_b32 v15, 64, v7")
        A("v_add_u32 v15, v15, v10")
        A("s_lshl_b32 s63, s60, 3")
        A(f"s_mov_b32 m0, {lds_sgpr}")
        for i in range(n):
            A(f"buffer_load_dwordx4 v{14 if i%2==0 else 15}, s[{srdn}:{srdn+3}], s61 offen nt lds")
            if i != n - 1:
                A("s_add_u32 s61, s61, s63")
                A("s_add_u32 m0, m0, 1024")

    BREG, AREG, ACC = 16, 72, 104

    def bload448(rb=128):
        A("s_lshl_b32 s30, s3, 5")
        A(f"v_xor_b32 v10, s30, v{9 if rb == 128 else 5}")
        for ks in range(14):
            A(f"ds_read_b64_tr_b16 v[{BREG+4*ks}:{BREG+4*ks+1}], v10 offset:{WT+ks*32*rb}")
            A(f"ds_read_b64_tr_b16 v[{BREG+4*ks+2}:{BREG+4*ks+3}], v10 offset:{WT+ks*32*rb+4*rb}")

    def gemv448(swap, fill=None):
        for ks in range(8):
            A(f"ds_read_b128 v[{AREG+4*ks}:{AREG+4*ks+3}], v13 offset:{ks*64}")
        for ks in range(14):
            A(f"s_waitcnt lgkmcnt({min(7, 13 - ks)})")
            a = AREG + 4 * (ks % 8)
            c = "0" if ks == 0 else f"v[{ACC}:{ACC+3}]"
            x, w = f"v[{a}:{a+3}]", f"v[{BREG+4*ks}:{BREG+4*ks+3}]"
            if swap:
                x, w = w, x
            A(f"v_mfma_f32_16x16x32_bf16 v[{ACC}:{ACC+3}], {x}, {w}, {c}")
            if ks + 8 < 14:
                A(f"ds_read_b128 v[{a}:{a+3}], v13 offset:{(ks+8)*64}")
            if fill is not None:
                fill(ks)

    def silu_c():
        A("v_lshlrev_b32 v16, 16, v11")
        A("v_and_b32 v17, 0xffff0000, v11")
        A("v_mul_f32 v18, 0xbfb8aa3b, v16")
        A("v_mul_f32 v19, 0xbfb8aa3b, v17")
        A("v_exp_f32 v18, v18")
        A("v_exp_f32 v19, v19")
        A("v_add_f32 v18, 1.0, v18")
        A("v_add_f32 v19, 1.0, v19")
        A("v_rcp_f32 v18, v18")
        A("v_rcp_f32 v19, v19")
        A("v_mul_f32 v16, v16, v18")
        A("v_mul_f32 v17, v17, v19")
        A("v_cvt_pk_bf16_f32 v16, v16, v17")
        A("ds_write_b32 v10, v16")

    def x_wait(name):
        A("v_lshlrev_b32 v10, 7, v1")
        A(f"s_mov_b32 s30, {SPIN}")
        A(f"s_movk_i32 s62, {G_X}")
        A("s_mov_b64 exec, 0xfffffff")
        A(f"L_{name}:")
        A("buffer_load_dwordx2 v[108:109], v10, s[16:19], s62 offen sc1")
        A("s_sub_u32 s30, s30, 1")
        A(f"s_cbranch_scc1 L_{name}_x")
        A("s_waitcnt vmcnt(0)")
        A(f"v_cmp_ne_u32 vcc, {TAG}, v109")
        A(f"s_cbranch_vccnz L_{name}")
        A(f"L_{name}_x:")
        A("s_waitcnt vmcnt(0)")

    def code_prefetch(tag):
        A("s_getpc_b64 s[60:61]")
        A(f"L_pc_{tag}:")
        A(f"s_sub_u32 s60, s60, L_pc_{tag}-{NAME}_kernel")
        A("s_subb_u32 s61, s61, 0")
        A("v_lshlrev_b32 v20, 7, v1")
        A("v_add_u32 v21, 0x2000, v20")
        A(f"v_min_u32 v21, L_exit-{NAME}_kernel, v21")
        A("global_load_dword v22, v20, s[60:61]")
        A("global_load_dword v23, v21, s[60:61]")

    A("L_m:")
    A("s_cmp_ge_u32 s5, 28")
    A("s_cbranch_scc1 L_exit")
    A("s_cmp_lg_u32 s3, 15")
    A("s_cbranch_scc1 L_m_nopf")
    code_prefetch("m")
    A("L_m_nopf:")
    A("v_lshrrev_b32 v14, 2, v1")
    A("v_mul_u32_u24 v14, 5376, v14")
    A("v_lshrrev_b32 v15, 5, v1")
    A("v_lshlrev_b32 v15, 1, v15")
    A("v_and_b32 v12, 3, v1")
    A("v_xor_b32 v15, v15, v12")
    A("v_lshl_add_u32 v14, v15, 4, v14")
    A("s_mul_i32 s62, s3, 86016")
    A("s_lshl_b32 s61, s5, 6")
    A("s_add_u32 s62, s62, s61")
    A("s_lshl_b32 m0, s3, 10")
    A(f"s_mov_b32 s22, {448*5376}")
    A("s_mov_b32 s23, 0x20000")
    A("s_movk_i32 s26, 1792")
    A("s_mov_b32 s27, 0x20000")
    xv_addr()
    A("s_waitcnt lgkmcnt(0)")
    A("s_mov_b32 s20, s50")
    A("s_mov_b32 s21, s51")
    A("s_mov_b32 s24, s48")
    A("s_mov_b32 s25, s49")
    A("buffer_load_dword v11, v12, s[24:27], 0 offen")
    A("buffer_load_dwordx4 v14, s[20:23], s62 offen nt lds")
    A("s_cmp_ge_u32 s3, 12")
    A("s_cbranch_scc1 L_m_dma1")
    A("s_add_u32 s62, s62, 1376256")
    A("s_add_u32 m0, m0, 16384")
    A("s_nop 0")
    A("buffer_load_dwordx4 v14, s[20:23], s62 offen nt lds")
    A("L_m_dma1:")
    A(f"s_load_dword {EP}, s[56:57], {EPOCH}")
    if stamps:
        A("v_writelane_b32 v127, s98, 14")
    A("s_mov_b32 s16, s56")
    A("s_mov_b32 s17, s57")
    STAMP(0)
    ft_addr()
    A("v_lshrrev_b32 v15, 2, v2")
    A("v_lshl_add_u32 v5, v3, 3, v15")
    A("v_lshlrev_b32 v5, 6, v5")
    A("v_and_b32 v15, 3, v2")
    A("v_lshl_add_u32 v5, v15, 3, v5")
    A("v_lshl_add_u32 v5, v14, 4, v5")
    A("s_lshl_b32 s31, s5, 7")
    A(f"s_add_u32 s31, s31, {G_MOD}")
    A(f"s_movk_i32 s29, {1344*8}")
    A("s_cmp_ge_u32 s3, 7")
    A("s_cbranch_scc1 L_m_nosilu")
    A("s_waitcnt vmcnt(2)")
    silu_c()
    A("L_m_nosilu:")
    A("s_waitcnt vmcnt(0) lgkmcnt(0)")
    mk_tag()
    A("s_barrier")
    STAMP(1)
    A("s_cmp_ge_u32 s3, 2")
    A("s_cbranch_scc1 L_m_pre")
    bload448(64)
    A("s_mov_b32 s7, 2")
    A("s_branch L_front_gemv")
    A("L_m_pre:")
    A("s_cmp_ge_u32 s3, 11")
    A("s_cbranch_scc1 L_m_ret")
    A("v_mov_b32 v20, -1")
    A("v_mov_b32 v21, -1")
    A("v_mov_b32 v22, -1")
    A("v_mov_b32 v23, -1")
    A("v_lshlrev_b32 v12, 4, v0")
    A("s_mul_i32 s62, s5, 9216")
    A(f"s_add_u32 s62, s62, {P4-2048}")
    A("buffer_store_dwordx4 v[20:23], v12, s[16:19], s62 offen sc1")
    A("L_m_ret:")
    A("s_waitcnt vmcnt(0)")
    A("s_barrier")
    A("s_cmp_lg_u32 s3, 15")
    A("s_cbranch_scc1 L_m_nox")
    A("s_getreg_b32 s30, hwreg(HW_REG_XCC_ID)")
    A("s_and_b32 s30, s30, 15")
    A("v_mov_b32 v20, s30")
    A(f"v_mov_b32 v21, {TAG}")
    A("s_lshl_b32 s30, s5, 7")
    A(f"s_add_u32 s30, s30, {G_X}")
    A("v_mov_b32 v12, 0")
    A("s_mov_b64 exec, 1")
    A("buffer_store_dwordx2 v[20:21], v12, s[16:19], s30 offen sc1")
    A("s_mov_b64 exec, -1")
    A("L_m_nox:")
    A("s_barrier")
    A("s_movk_i32 s60, 5376")
    A("s_add_u32 s61, s5, 14")
    A("s_lshl_b32 s31, s61, 8")
    A(f"s_add_u32 s31, s31, {G_MOD}")
    A("s_lshl_b32 s61, s61, 7")
    dma_coop(16, WT, "r")
    srd(24, 46, 1792 * 896)
    A("s_sub_u32 s6, s3, 4")
    A("s_cmp_ge_u32 s6, 7")
    A("s_cbranch_scc1 L_m_now2")
    A("s_movk_i32 s60, 896")
    A("s_mul_i32 s61, s5, 57344")
    A("s_lshl_b32 s63, s6, 7")
    A("s_add_u32 s61, s61, s63")
    A("s_lshl_b32 s7, s6, 13")
    A(f"s_add_u32 s7, s7, {W2T}")
    dma_own(24, "s7")
    A("s_waitcnt vmcnt(8)")
    A("s_branch L_m_rbar")
    A("L_m_now2:")
    A("s_waitcnt vmcnt(0)")
    A("L_m_rbar:")
    A("s_barrier")
    STAMP(2)
    A("s_cmp_ge_u32 s3, 4")
    A("s_cbranch_scc1 L_m_ret2")
    bload448()
    A("s_mov_b32 s7, 3")
    A("s_branch L_front_gemv")
    A("L_m_ret2:")
    A("s_barrier")
    A("s_cmp_ge_u32 s3, 7")
    A("s_cselect_b32 s4, 1, 0")
    A("s_mul_i32 s30, s4, 7")
    A("s_sub_u32 s30, s3, s30")
    A("s_lshl_b32 s30, s30, 6")
    A("v_lshl_add_u32 v4, v2, 2, v3")
    A("v_add_u32 v4, s30, v4")
    A("s_mul_i32 s30, s4, 448")
    A("v_add_u32 v126, s30, v4")
    srd(24, 32, 1792)
    A("v_lshlrev_b32 v11, 1, v126")
    A("buffer_load_ushort v122, v11, s[24:27], 0 offen")
    srd(20, 44, 448 * 3584)
    A("s_movk_i32 s60, 3584")
    A("s_lshl_b32 s61, s5, 7")
    dma_coop(16, WT, "w1")
    A("v_and_b32 v15, 7, v2")
    A(f"v_mul_u32_u24 v13, {XS}, v15")
    A("v_lshl_add_u32 v13, v3, 4, v13")
    A(f"v_add_u32 v13, {XV}, v13")
    A("s_cmp_ge_u32 s3, 14")
    A("s_cbranch_scc1 L_m_fw")
    A("v_lshrrev_b32 v10, 1, v4")
    A("v_lshlrev_b32 v10, 3, v10")
    A(f"s_mov_b32 s30, {SPIN}")
    A(f"s_mul_i32 s62, s4, {1344*8}")
    A(f"s_add_u32 s62, s62, {G_MOD+448*8}")
    A("s_add_u32 s63, s62, 3584")
    A("L_m_mpoll:")
    A("buffer_load_dwordx2 v[108:109], v10, s[16:19], s62 offen sc1")
    A("buffer_load_dwordx2 v[110:111], v10, s[16:19], s62 offen offset:1792 sc1")
    A("buffer_load_dwordx2 v[112:113], v10, s[16:19], s63 offen sc1")
    A("buffer_load_dwordx2 v[114:115], v10, s[16:19], s63 offen offset:1792 sc1")
    A("s_sub_u32 s30, s30, 1")
    A("s_cbranch_scc1 L_m_mgot")
    A("s_waitcnt vmcnt(0)")
    A(f"v_cmp_ne_u32 vcc, {TAG}, v109")
    A(f"v_cmp_ne_u32 s[28:29], {TAG}, v111")
    A("s_or_b64 vcc, vcc, s[28:29]")
    A(f"v_cmp_ne_u32 s[28:29], {TAG}, v113")
    A("s_or_b64 vcc, vcc, s[28:29]")
    A(f"v_cmp_ne_u32 s[28:29], {TAG}, v115")
    A("s_or_b64 vcc, vcc, s[28:29]")
    A("s_cbranch_scc1 L_m_mpoll")
    A("L_m_mgot:")
    A("s_waitcnt vmcnt(0)")
    A("v_and_b32 v10, 1, v4")
    A("v_lshlrev_b32 v10, 4, v10")
    A("v_lshrrev_b32 v108, v10, v108")
    A("v_lshrrev_b32 v110, v10, v110")
    A("v_lshrrev_b32 v112, v10, v112")
    A("v_lshrrev_b32 v114, v10, v114")
    A("v_lshlrev_b32 v123, 16, v108")
    A("v_lshlrev_b32 v112, 16, v112")
    A("v_add_f32 v112, 1.0, v112")
    A("v_cvt_pk_bf16_f32 v112, v112, v112")
    A("v_lshlrev_b32 v114, 16, v114")
    A(f"s_mul_i32 s30, s4, {4*XS}")
    A(f"s_add_u32 s30, s30, {XV}")
    A("v_lshlrev_b32 v125, 1, v4")
    A("v_add_u32 v125, s30, v125")
    A(f"ds_write_b16 v125, v112 offset:{XS}")
    A(f"ds_write_b16 v125, v110 offset:{2*XS}")
    A("v_lshlrev_b32 v126, 2, v126")
    A(f"v_add_u32 v126, {X2F}, v126")
    A(f"ds_write_b32 v126, v114 offset:{GBF-X2F}")
    A("v_and_b32 v124, 0xffff0000, v112")
    A("v_lshlrev_b32 v122, 16, v122")
    A("s_branch L_m_join")
    A("L_m_fw:")
    x_wait("m_xpoll")
    A("s_getreg_b32 s30, hwreg(HW_REG_XCC_ID)")
    A("s_and_b32 s30, s30, 15")
    A("v_cmp_ne_u32 vcc, s30, v108")
    A("s_mov_b64 exec, -1")
    A("s_cmp_eq_u64 vcc, 0")
    A(f"s_mov_b32 s61, {P5}")
    A(f"s_cselect_b32 s60, {P5L if local5 else P5}, s61")
    A("s_sub_u32 s4, s3, 14")
    A("v_and_b32 v10, 3, v2")
    A("v_lshl_add_u32 v10, v10, 2, v3")
    A("s_lshl_b32 s30, s5, 4")
    A("s_mul_i32 s31, s4, 448")
    A("s_add_u32 s30, s30, s31")
    A("v_add_u32 v10, s30, v10")
    A("v_lshlrev_b32 v11, 2, v10")
    A(f"v_add_u32 v11, {X2F}, v11")
    A("v_lshlrev_b32 v10, 1, v10")
    A("v_lshrrev_b32 v12, 2, v1")
    A("v_and_b32 v14, 3, v1")
    A("v_lshlrev_b32 v14, 4, v14")
    A("v_mul_u32_u24 v12, 3584, v12")
    A("v_add_u32 v12, v12, v14")
    A("v_add_u32 v13, 57344, v12")
    A("v_cmp_gt_u32 vcc, 48, v1")
    A("v_cndmask_b32 v13, v12, v13, vcc")
    A("v_cndmask_b32 v28, 0, 1.0, vcc")
    A("s_lshl_b32 s30, s5, 6")
    A("s_mul_i32 s31, s4, 1792")
    A("s_add_u32 s30, s30, s31")
    A("s_add_u32 s60, s60, s30")
    srd(24, 52, 1792)
    A("L_m_join:")
    A("s_waitcnt vmcnt(0) lgkmcnt(0)")
    A("s_barrier")
    STAMP(8)
    A("s_cmp_ge_u32 s3, 14")
    A("s_cbranch_scc1 L_m_bar1")
    A("s_cmp_ge_u32 s3, 4")
    A("s_cbranch_scc1 L_m_now1")
    bload448()
    A("v_lshlrev_b32 v8, 2, v1")
    A(f"v_add_u32 v8, {X2F}, v8")
    A("s_lshl_b32 s30, s3, 5")
    A(f"s_add_u32 s30, s30, {ACT}")
    A("v_lshlrev_b32 v9, 1, v2")
    A("v_mul_u32_u24 v15, 144, v3")
    A("v_add3_u32 v9, v9, v15, s30")
    A("s_branch L_m_pp")
    A("L_m_now1:")
    A("s_cmp_ge_u32 s3, 11")
    A("s_cbranch_scc1 L_m_pp")
    A("v_add_u32 v12, s7, v9")
    A("v_xor_b32 v13, 32, v12")
    A("v_xor_b32 v14, 64, v12")
    A("v_xor_b32 v15, 0x60, v12")
    for ks in range(2):
        for nt in range(4):
            r = 16 + (ks * 4 + nt) * 4
            A(f"ds_read_b64_tr_b16 v[{r}:{r+1}], v{12+nt} offset:{ks*4096}")
            A(f"ds_read_b64_tr_b16 v[{r+2}:{r+3}], v{12+nt} offset:{ks*4096+512}")
    A("v_and_b32 v8, 1, v2")
    A("v_mul_u32_u24 v8, 144, v8")
    A("v_lshl_add_u32 v8, v3, 4, v8")
    A(f"v_add_u32 v8, {ACT}, v8")
    A("v_lshlrev_b32 v9, 2, v1")
    A("s_mul_i32 s60, s5, 3584")
    A("s_lshl_b32 s61, s6, 8")
    A("s_add_u32 s60, s60, s61")
    A(f"s_add_u32 s61, s60, {P5}")
    A(f"s_add_u32 s60, s60, {P5L}")
    A("v_cmp_eq_u32 s[64:65], 1, v3")
    A("v_cmp_eq_u32 s[66:67], 2, v3")
    A("v_cmp_eq_u32 s[68:69], 3, v3")
    A("L_m_pp:")
    A("v_mul_u32_u24 v10, 1792, v3")
    A("v_lshl_add_u32 v10, v2, 4, v10")
    A("s_mul_i32 s30, s4, 12544")
    A("s_lshl_b32 s31, s3, 8")
    A("s_add_u32 s30, s30, s31")
    A(f"s_add_u32 s30, s30, {P4}")
    A("s_add_u32 s31, s30, 7168")
    A(f"s_mov_b32 s62, {SPIN}")
    A("L_m_poll:")
    A("buffer_load_dwordx4 v[108:111], v10, s[16:19], s30 offen sc1")
    A("buffer_load_dwordx4 v[112:115], v10, s[16:19], s31 offen sc1")
    A("s_waitcnt vmcnt(0)")
    A("v_max3_u32 v116, v108, v109, v110")
    A("v_max3_u32 v117, v111, v112, v113")
    A("v_max3_u32 v116, v116, v114, v115")
    A("v_max_u32 v116, v116, v117")
    A("v_cmp_eq_u32 vcc, -1, v116")
    A("s_sub_u32 s62, s62, 1")
    A("s_cbranch_scc1 L_m_got")
    A("s_and_b64 exec, exec, vcc")
    A("s_cbranch_execnz L_m_poll")
    A("L_m_got:")
    A("s_mov_b64 exec, -1")
    STAMP(9)
    for i in range(4):
        A(f"v_add_f32 v{116+i}, v{108+i}, v{112+i}")
    treduce(116, 117, 118, 119)
    A("v_fmac_f32 v122, v123, v116")
    A("v_mul_f32 v117, v122, v124")
    A("v_cvt_pk_bf16_f32 v117, v117, v117")
    A("ds_write_b16 v125, v117")
    A("ds_write_b32 v126, v122")
    A("L_m_bar1:")
    A("s_waitcnt lgkmcnt(0)")
    A("s_barrier")
    A("s_cmp_ge_u32 s3, 4")
    A("s_cbranch_scc1 L_m_bar2")
    for i in range(7):
        A(f"ds_read2st64_b32 v[{108+2*i}:{109+2*i}], v8 offset0:{i} offset1:{i+7}")
    st = []
    st.append(["v_pk_add_f32 v[4:5], v[108:109], v[110:111]", "v_pk_mul_f32 v[6:7], v[108:109], v[108:109]"])
    st.append(["v_pk_add_f32 v[4:5], v[4:5], v[112:113]", "v_pk_fma_f32 v[6:7], v[110:111], v[110:111], v[6:7]"])
    st.append(["v_pk_add_f32 v[4:5], v[4:5], v[114:115]", "v_pk_fma_f32 v[6:7], v[112:113], v[112:113], v[6:7]"])
    st.append(["v_pk_add_f32 v[4:5], v[4:5], v[116:117]", "v_pk_fma_f32 v[6:7], v[114:115], v[114:115], v[6:7]"])
    st.append(["v_pk_add_f32 v[4:5], v[4:5], v[118:119]", "v_pk_fma_f32 v[6:7], v[116:117], v[116:117], v[6:7]"])
    st.append(["v_pk_add_f32 v[4:5], v[4:5], v[120:121]", "v_pk_fma_f32 v[6:7], v[118:119], v[118:119], v[6:7]", "v_pk_fma_f32 v[6:7], v[120:121], v[120:121], v[6:7]"])
    st.append(["v_permlane32_swap_b32 v4, v6", "v_permlane32_swap_b32 v5, v7", "v_add_f32 v4, v4, v6", "v_add_f32 v5, v5, v7"])
    st.append(["v_permlane16_swap_b32 v4, v5", "v_add_f32 v4, v4, v5"])
    st.append(["v_add_f32_dpp v4, v4, v4 row_ror:1 row_mask:0xf bank_mask:0xf"])
    st.append(["v_add_f32_dpp v4, v4, v4 row_ror:2 row_mask:0xf bank_mask:0xf"])
    st.append(["v_add_f32_dpp v4, v4, v4 row_ror:4 row_mask:0xf bank_mask:0xf"])
    st.append(["v_add_f32_dpp v4, v4, v4 row_ror:8 row_mask:0xf bank_mask:0xf"])
    st.append(["v_mul_f32 v4, 0x3b124925, v4", "v_mov_b32 v5, v4", "v_permlane32_swap_b32 v4, v5"])
    st.append(["v_fma_f32 v5, -v4, v4, v5", "v_add_f32 v5, 0x3727c5ac, v5", "v_rsq_f32 v5, v5"])

    def fill(ks):
        for s in st[ks]:
            A(s)
    gemv448(False, fill)
    A("s_mov_b32 exec_hi, 0")
    A(f"v_fma_f32 v{ACC}, -v4, v{ACC+1}, v{ACC}")
    A(f"v_fma_f32 v{ACC}, v5, v{ACC}, v{ACC+2}")
    A(f"v_mul_f32 v6, 0xbfb8aa3b, v{ACC}")
    A("v_exp_f32 v6, v6")
    A("v_add_f32 v6, 1.0, v6")
    A("v_rcp_f32 v6, v6")
    A(f"v_mul_f32 v6, v6, v{ACC}")
    A("v_cvt_pk_bf16_f32 v6, v6, v6")
    A("ds_write_b16 v9, v6")
    A("s_mov_b64 exec, -1")
    A("L_m_bar2:")
    A("s_waitcnt lgkmcnt(0)")
    A("s_barrier")
    STAMP(10)
    A("s_cmp_ge_u32 s3, 14")
    A("s_cbranch_scc1 L_final")
    A("s_cmp_ge_u32 s6, 7")
    A("s_cbranch_scc1 L_fin")
    A("ds_read_b128 v[48:51], v8")
    A("ds_read_b128 v[52:55], v8 offset:64")
    for ks in range(2):
        A(f"s_waitcnt lgkmcnt({1-ks})")
        for nt in range(4):
            r = 16 + (ks * 4 + nt) * 4
            c = "0" if ks == 0 else f"v[{64+4*nt}:{67+4*nt}]"
            A(f"v_mfma_f32_16x16x32_bf16 v[{64+4*nt}:{67+4*nt}], v[{48+4*ks}:{51+4*ks}], v[{r}:{r+3}], {c}")
    for nt, m in ((1, "s[64:65]"), (2, "s[66:67]"), (3, "s[68:69]")):
        for b in range(2):
            A(f"v_cndmask_b32 v{64+b}, v{64+b}, v{64+4*nt+b}, {m}")
    for b in range(2):
        A(f"v_min_u32 v{64+b}, -2, v{64+b}")
    A("buffer_store_dword v64, v9, s[16:19], s60 offen")
    A("buffer_store_dword v65, v9, s[16:19], s60 offen offset:1792")
    A("buffer_store_dword v64, v9, s[16:19], s61 offen sc1")
    A("buffer_store_dword v65, v9, s[16:19], s61 offen offset:1792 sc1")
    STAMP(11)
    A("s_branch L_fin")

    A("L_final:")
    A("ds_read_b32 v30, v11")
    A(f"ds_read_b32 v31, v11 offset:{GBF-X2F}")
    A(f"s_mov_b32 s62, {SPIN}")
    for i in range(PD - 1):
        A("buffer_load_dwordx4 v[16:19], v12, s[16:19], s60 offen sc1")
        A("buffer_load_dwordx4 v[20:23], v13, s[16:19], s60 offen sc1")
    A("L_fin_poll:")
    A("buffer_load_dwordx4 v[16:19], v12, s[16:19], s60 offen sc1")
    A("buffer_load_dwordx4 v[20:23], v13, s[16:19], s60 offen sc1")
    A(f"s_waitcnt vmcnt({2*(PD-1)})")
    A("v_max3_u32 v24, v16, v17, v18")
    A("v_max3_u32 v25, v19, v20, v21")
    A("v_max3_u32 v24, v24, v22, v23")
    A("v_max_u32 v24, v24, v25")
    A("v_cmp_eq_u32 vcc, -1, v24")
    A("s_sub_u32 s62, s62, 1")
    A("s_cbranch_scc1 L_fin_got")
    A("s_cbranch_vccnz L_fin_poll")
    A("L_fin_got:")
    STAMP(11)
    for i in range(4):
        A(f"v_fma_f32 v{32+i}, v{20+i}, v28, v{16+i}")
    treduce(32, 33, 34, 35)
    A("v_add_f32_dpp v32, v32, v32 row_ror:4 row_mask:0xf bank_mask:0xf")
    A("v_add_f32_dpp v32, v32, v32 row_ror:8 row_mask:0xf bank_mask:0xf")
    A("s_waitcnt lgkmcnt(0)")
    A("v_fmac_f32 v30, v31, v32")
    A("v_cvt_pk_bf16_f32 v30, v30, v30")
    A("s_mov_b32 exec_lo, 0x000f000f")
    A("s_mov_b32 exec_hi, 0x000f000f")
    A("buffer_store_short v30, v10, s[24:27], 0 offen")
    A("s_or_b32 s30, s4, s5")
    A("s_cmp_lg_u32 s30, 0")
    A("s_cbranch_scc1 L_noepoch")
    A("s_mov_b64 exec, 1")
    A(f"v_mov_b32 v26, {TAG}")
    A(f"v_mov_b32 v27, {EPOCH}")
    A("buffer_store_dword v26, v27, s[16:19], 0 offen sc1")
    A("L_noepoch:")
    A("s_mov_b64 exec, -1")
    STAMP(12)
    A("s_branch L_fin")

    A("L_ft:")
    A("s_cmp_lg_u32 s3, 8")
    A("s_cbranch_scc1 L_ft1")
    code_prefetch("ft")
    A("L_ft1:")
    ft_addr()
    A(f"s_sub_u32 s6, s6, {NA}")
    A("s_cmp_lt_u32 s3, 8")
    A("s_cbranch_scc1 L_front_q")
    A("s_cmp_ge_u32 s6, 56")
    A("s_cbranch_scc1 L_exit")
    A("s_waitcnt lgkmcnt(0)")
    A(f"s_load_dword {EP}, s[56:57], {EPOCH}")
    if stamps:
        A("v_writelane_b32 v127, s98, 14")
    A("s_mov_b32 s16, s56")
    A("s_mov_b32 s17, s57")
    A("s_waitcnt lgkmcnt(0)")
    mk_tag()
    A("s_barrier")
    A("s_barrier")
    A("s_branch L_front_done")

    A("L_front_q:")
    xv_addr()
    A("v_mov_b32 v6, v10")
    A("v_lshlrev_b32 v10, 4, v1")
    A("v_mov_b32 v11, 0x10000")
    A("v_cmp_gt_u32 s[28:29], 56, v1")
    A("s_movk_i32 s60, 8192")
    A("s_lshl_b32 s31, s6, 8")
    A(f"s_add_u32 s31, s31, {G_Q}")
    A("s_lshl_b32 s61, s6, 7")
    A("v_cndmask_b32 v10, v11, v10, s[28:29]")
    A("s_waitcnt lgkmcnt(0)")
    srd(24, 32, 1792)
    A("buffer_load_dwordx4 v[16:19], v10, s[24:27], 0 offen")
    A("buffer_load_dwordx4 v[20:23], v10, s[24:27], 0 offen offset:896")
    A("buffer_load_dword v24, v12, s[24:27], 0 offen")
    srd(20, 38, 448 * 8192)
    dma_coop(8, WT, "q")
    A(f"s_load_dword {EP}, s[56:57], {EPOCH}")
    if stamps:
        A("v_writelane_b32 v127, s98, 14")
    A("s_mov_b32 s16, s56")
    A("s_mov_b32 s17, s57")
    A("s_cmp_ge_u32 s3, 3")
    A("s_cbranch_scc1 L_q_nopre")
    A("v_mov_b32 v28, -1")
    A("v_mov_b32 v29, -1")
    A("v_mov_b32 v30, -1")
    A("v_mov_b32 v31, -1")
    A("v_lshlrev_b32 v5, 4, v0")
    A("s_mul_i32 s62, s6, 3072")
    A(f"s_add_u32 s62, s62, {P3}")
    A("buffer_store_dwordx4 v[28:31], v5, s[16:19], s62 offen sc1")
    A("s_waitcnt vmcnt(8)")
    A("L_q_nopre:")
    STAMP(0)
    A("v_lshlrev_b32 v4, 3, v0")
    A(f"v_add_u32 v5, {1344*8-224*8}, v4")
    A("v_cndmask_b32 v4, v5, v4, vcc")
    A("s_waitcnt vmcnt(7)")
    for b in range(2):
        for i in range(4):
            A(f"v_lshlrev_b32 v{32+8*b+2*i}, 16, v{16+4*b+i}")
            A(f"v_and_b32 v{33+8*b+2*i}, 0xffff0000, v{16+4*b+i}")
    for b in range(2):
        base = 32 + 8 * b
        A(f"v_add_f32 v{48+b}, v{base}, v{base+1}")
        for i in range(2, 8):
            A(f"v_add_f32 v{48+b}, v{48+b}, v{base+i}")
    wave_sum(48, 50)
    wave_sum(49, 51)
    A("v_mul_f32 v48, 0x3b124925, v48")
    A("v_mul_f32 v49, 0x3b124925, v49")
    for b in range(2):
        base = 32 + 8 * b
        for i in range(8):
            A(f"v_sub_f32 v{base+i}, v{base+i}, v{48+b}")
        A(f"v_mul_f32 v{52+b}, v{base}, v{base}")
        for i in range(1, 8):
            A(f"v_fmac_f32 v{52+b}, v{base+i}, v{base+i}")
        A(f"v_cndmask_b32 v{52+b}, 0, v{52+b}, s[28:29]")
    wave_sum(52, 50)
    wave_sum(53, 51)
    A("v_cndmask_b32 v48, v49, v48, vcc")
    A("v_cndmask_b32 v52, v53, v52, vcc")
    A("v_mov_b32 v54, 0x3727c5ac")
    A("v_fmac_f32 v54, 0x3b124925, v52")
    A("v_rsq_f32 v54, v54")
    A("v_and_b32 v25, 0xffff0000, v24")
    A("v_lshlrev_b32 v24, 16, v24")
    A("v_sub_f32 v24, v24, v48")
    A("v_sub_f32 v25, v25, v48")
    A("v_mul_f32 v112, v24, v54")
    A("v_mul_f32 v113, v25, v54")
    A(f"s_movk_i32 s29, {2048*8}")
    A("s_waitcnt vmcnt(0) lgkmcnt(0)")
    mk_tag()
    A("s_barrier")
    STAMP(1)
    A("s_cmp_ge_u32 s3, 4")
    A("s_cbranch_scc1 L_q_nob")
    bload448()
    A("L_q_nob:")
    A("s_cmp_ge_u32 s3, 7")
    A("s_cbranch_scc1 L_q_bar")
    A(f"s_mov_b32 s30, {SPIN}")
    A(f"s_movk_i32 s62, {G_MOD}")
    A("L_q_poll:")
    A("buffer_load_dwordx2 v[108:109], v4, s[16:19], s62 offen sc1")
    A("buffer_load_dwordx2 v[110:111], v4, s[16:19], s62 offen offset:1792 sc1")
    A("s_sub_u32 s30, s30, 1")
    A("s_cbranch_scc1 L_q_got")
    A("s_waitcnt vmcnt(0)")
    A(f"v_cmp_ne_u32 vcc, {TAG}, v109")
    A(f"v_cmp_ne_u32 s[60:61], {TAG}, v111")
    A("s_or_b64 vcc, vcc, s[60:61]")
    A("s_cbranch_scc1 L_q_poll")
    A("L_q_got:")
    A("s_waitcnt vmcnt(0)")
    STAMP(2)
    A("v_lshlrev_b32 v114, 16, v110")
    A("v_and_b32 v115, 0xffff0000, v110")
    A("v_add_f32 v114, 1.0, v114")
    A("v_add_f32 v115, 1.0, v115")
    A("v_lshlrev_b32 v110, 16, v108")
    A("v_and_b32 v111, 0xffff0000, v108")
    A("v_fmac_f32 v110, v112, v114")
    A("v_fmac_f32 v111, v113, v115")
    A("v_cvt_pk_bf16_f32 v110, v110, v111")
    A("ds_write_b32 v6, v110")
    A("L_q_bar:")
    A("s_waitcnt lgkmcnt(0)")
    A("s_barrier")
    A("s_mov_b32 s7, 1")
    A("s_cmp_ge_u32 s3, 4")
    A("s_cbranch_scc1 L_front_done")
    A("L_front_gemv:")
    A("s_lshl_b32 s30, s3, 6")
    A("s_add_u32 s31, s31, s30")
    A("v_mul_lo_u32 v10, v2, s29")
    A("v_lshl_add_u32 v10, v3, 4, v10")
    gemv448(True)
    A("s_mov_b32 exec_lo, 0x00030003")
    A("s_mov_b32 exec_hi, 0x00030003")
    A(f"v_cvt_pk_bf16_f32 v{ACC}, v{ACC}, v{ACC+1}")
    A(f"v_cvt_pk_bf16_f32 v{ACC+2}, v{ACC+2}, v{ACC+3}")
    A(f"v_mov_b32 v{ACC+1}, {TAG}")
    A(f"v_mov_b32 v{ACC+3}, {TAG}")
    A(f"buffer_store_dwordx4 v[{ACC}:{ACC+3}], v10, s[16:19], s31 offen sc1")
    A("s_mov_b64 exec, -1")
    if stamps:
        A("s_cmp_eq_u32 s7, 3")
        A("s_cbranch_scc1 L_m_ret2")
    STAMP(3)
    A("s_cmp_eq_u32 s7, 2")
    A("s_cbranch_scc1 L_m_ret")
    A("s_cmp_eq_u32 s7, 3")
    A("s_cbranch_scc1 L_m_ret2")
    A("L_front_done:")
    A("s_barrier")

    A("s_cmp_ge_u32 s6, 56")
    A("s_cbranch_scc1 L_fin")
    A("s_mul_i32 s4, s6, 37")
    A("s_lshr_b32 s4, s4, 8")
    A("s_mul_i32 s63, s4, 7")
    A("s_sub_u32 s5, s6, s63")
    srd(20, 40, 4096 * 896)
    A("s_movk_i32 s60, 896")
    A("s_lshl_b32 s61, s4, 4")
    A("s_add_u32 s61, s61, s3")
    A("s_mul_i32 s61, s61, 28672")
    A("s_lshl_b32 s63, s5, 7")
    A("s_add_u32 s61, s61, s63")
    A("s_lshl_b32 s7, s3, 12")
    dma_own(20, "s7", 4)
    A("s_and_b32 s6, s3, 7")
    A("s_lshr_b32 s7, s3, 3")
    A(f"v_min_u32 v10, {NS-1}, v2")
    A("v_lshlrev_b32 v10, 7, v10")
    A("v_lshl_add_u32 v10, v3, 4, v10")
    A(f"s_mul_i32 s31, s4, {P3K}")
    A(f"s_mul_i32 s62, s7, {NS*128}")
    A("s_add_u32 s31, s31, s62")
    A(f"s_add_u32 s31, s31, {P3}")
    A(f"s_mul_i32 s30, s6, {2*NS*128}")
    A("s_add_u32 s30, s30, s31")
    A("s_lshr_b32 s62, s6, 2")
    A("s_lshl2_add_u32 s31, s62, s31")
    A(f"s_add_u32 s31, s31, {L3O}")
    for r in range(4):
        A(f"v_lshl_add_u32 v{88+r}, v3, 2, {r}")
        A(f"v_cmp_gt_u32 s[{64+2*r}:{65+2*r}], {NS}, v{88+r}")
        A(f"v_min_u32 v{88+r}, {NS-1}, v{88+r}")
        A(f"v_lshlrev_b32 v{88+r}, 7, v{88+r}")
    A("s_lshl_b32 s62, s6, 13")
    A("v_add_u32 v12, s62, v9")
    A("v_xor_b32 v13, 32, v12")
    A("v_xor_b32 v14, 64, v12")
    A("v_xor_b32 v15, 0x60, v12")
    A("v_lshlrev_b32 v4, 2, v0")
    A(f"v_add_u32 v4, {RED}, v4")
    A("v_lshlrev_b32 v7, 2, v1")
    A("s_lshl_b32 s62, s3, 11")
    A(f"s_add_u32 s62, s62, {RED}")
    A("v_add_u32 v5, s62, v7")
    A("s_lshl3_add_u32 s28, s3, s4")
    A("s_mul_i32 s28, s28, 1792")
    A("s_lshl_b32 s29, s5, 8")
    A("s_add_u32 s28, s28, s29")
    A(f"s_add_u32 s28, s28, {P4}")
    A("v_lshlrev_b32 v60, 7, v1")
    A(f"v_add_u32 v60, {G_X}, v60")
    A("s_lshl_b32 s62, s4, 11")
    A(f"s_add_u32 s62, s62, {G_Q-32*256}")
    A("v_lshlrev_b32 v61, 8, v1")
    A("v_add_u32 v61, s62, v61")
    A("v_cmp_gt_u32 vcc, 32, v1")
    A("v_cndmask_b32 v60, v61, v60, vcc")
    A("s_mov_b32 exec_lo, 0xfffffff")
    A("s_mov_b32 exec_hi, 0xff")
    A(f"s_mov_b32 s62, {SPIN}")
    A("L_wo_xpoll:")
    A("buffer_load_dwordx2 v[62:63], v60, s[16:19], 0 offen sc1")
    A("s_sub_u32 s62, s62, 1")
    A("s_cbranch_scc1 L_wo_xgot")
    A("s_waitcnt vmcnt(0)")
    A(f"v_cmp_ne_u32 vcc, {TAG}, v63")
    A("s_cbranch_vccnz L_wo_xpoll")
    A("L_wo_xgot:")
    A("s_mov_b64 exec, -1")
    A("s_waitcnt vmcnt(0)")
    A("s_barrier")
    STAMP(8)
    for ks in range(2):
        for nt in range(4):
            r = 16 + (ks * 4 + nt) * 4
            A(f"ds_read_b64_tr_b16 v[{r}:{r+1}], v{12+nt} offset:{ks*4096}")
            A(f"ds_read_b64_tr_b16 v[{r+2}:{r+3}], v{12+nt} offset:{ks*4096+512}")
    A("v_mov_b32 v92, 0xff7fffff")
    A(f"s_mov_b32 s62, {SPIN}")
    A("L_wo_poll:")
    A("buffer_load_dwordx4 v[48:51], v10, s[16:19], s30 offen sc1")
    A("buffer_load_dwordx4 v[52:55], v10, s[16:19], s30 offen offset:64 sc1")
    for r in range(4):
        A(f"buffer_load_dword v{56+r}, v{88+r}, s[16:19], s31 offen sc1")
    A("s_waitcnt vmcnt(0)")
    A("v_max3_u32 v60, v48, v49, v50")
    A("v_max3_u32 v61, v51, v52, v53")
    A("v_max3_u32 v60, v60, v54, v55")
    A("v_max3_u32 v61, v61, v56, v57")
    A("v_max3_u32 v60, v60, v58, v59")
    A("v_max_u32 v60, v60, v61")
    A("v_cmp_eq_u32 vcc, -1, v60")
    A("s_sub_u32 s62, s62, 1")
    A("s_cbranch_scc1 L_wo_got")
    A("s_and_b64 exec, exec, vcc")
    A("s_cbranch_execnz L_wo_poll")
    A("L_wo_got:")
    A("s_mov_b64 exec, -1")
    STAMP(10)
    A("s_waitcnt lgkmcnt(0)")
    wcalc = []
    wcalc.append(["v_max3_f32 v60, v56, v57, v58", "v_max_f32 v60, v60, v59", "v_mov_b32 v61, v60"])
    wcalc.append(["v_permlane16_swap_b32 v61, v60", "v_max_f32 v60, v60, v61", "v_mov_b32 v61, v60"])
    wcalc.append(["v_permlane32_swap_b32 v61, v60", "v_max_f32 v60, v60, v61"] + [f"v_cndmask_b32 v{56+r}, v92, v{56+r}, s[{64+2*r}:{65+2*r}]" for r in range(4)])
    wcalc.append([f"v_sub_f32 v{84+r}, v{56+r}, v60" for r in range(4)])
    wcalc.append([f"v_exp_f32 v{84+r}, v{84+r}" for r in range(4)])
    wcalc.append(["v_add_f32 v60, v84, v85", "v_add_f32 v61, v86, v87", "v_add_f32 v60, v60, v61", "v_mov_b32 v61, v60"])
    wcalc.append(["v_permlane16_swap_b32 v61, v60", "v_add_f32 v60, v60, v61", "v_mov_b32 v61, v60"])
    wcalc.append(["v_permlane32_swap_b32 v61, v60", "v_add_f32 v60, v60, v61", "v_rcp_f32 v60, v60"])
    n = 0
    for nt in range(4):
        for ks in range(2):
            r = 16 + (ks * 4 + nt) * 4
            c = "0" if ks == 0 else f"v[{64+4*nt}:{67+4*nt}]"
            A(f"v_mfma_f32_16x16x32_bf16 v[{64+4*nt}:{67+4*nt}], v[{48+4*ks}:{51+4*ks}], v[{r}:{r+3}], {c}")
            for s in wcalc[n]:
                A(s)
            n += 1
    for nt in range(4):
        A(f"v_mul_f32 v{80+nt}, v84, v{64+4*nt}")
        for r in range(1, 4):
            A(f"v_fmac_f32 v{80+nt}, v{84+r}, v{64+4*nt+r}")
    treduce(80, 81, 82, 83)
    A("v_mul_f32 v80, v80, v60")
    A("ds_write_b32 v4, v80")
    A("s_waitcnt lgkmcnt(0)")
    A("s_barrier")
    A("s_cmp_ge_u32 s3, 2")
    A("s_cbranch_scc1 L_fin")
    for i in range(4):
        A(f"ds_read2st64_b32 v[{16+2*i}:{17+2*i}], v5 offset0:{2*i} offset1:{2*i+1}")
    A("s_waitcnt lgkmcnt(2)")
    A("v_add_f32 v16, v16, v17")
    A("v_add_f32 v18, v18, v19")
    A("s_waitcnt lgkmcnt(0)")
    A("v_add_f32 v20, v20, v21")
    A("v_add_f32 v22, v22, v23")
    A("v_add_f32 v16, v16, v18")
    A("v_add_f32 v20, v20, v22")
    A("v_add_f32 v16, v16, v20")
    A("v_min_u32 v16, -2, v16")
    A("buffer_store_dword v16, v7, s[16:19], s28 offen sc1")
    STAMP(11)

    A("L_fin:")
    if stamps:
        STAMP(15)
        A("s_lshl_b32 s30, s2, 4")
        A("s_add_u32 s30, s30, s3")
        A("s_lshl_b32 s30, s30, 6")
        A(f"s_add_u32 s30, s30, {STAMPS}")
        A("v_lshlrev_b32 v2, 2, v1")
        A("s_mov_b64 exec, 0xffff")
        A("buffer_store_dword v127, v2, s[16:19], s30 offen")
    A("L_exit:")
    A("s_endpgm")
    body = A.text()
    out = HDR
    out += f"; @launch grid=(256,1,1) block=(1024,1,1) lds={LDS_BYTES}\n"
    out += '.amdgcn_target "amdgcn-amd-amdhsa--gfx950"\n.text\n'
    out += f".globl {NAME}_kernel\n.p2align 8\n.type {NAME}_kernel,@function\n"
    out += body
    out += f""".section .rodata,"a"
.p2align 6
.amdhsa_kernel {NAME}_kernel
  .amdhsa_next_free_vgpr 128
  .amdhsa_next_free_sgpr 100
  .amdhsa_accum_offset 128
  .amdhsa_group_segment_fixed_size 0
  .amdhsa_kernarg_size 104
  .amdhsa_user_sgpr_count 2
  .amdhsa_user_sgpr_kernarg_segment_ptr 1
  .amdhsa_system_sgpr_workgroup_id_x 1
.end_amdhsa_kernel
"""
    return out


if __name__ == "__main__":
    open("k6.s", "w").write(gen(False))
    open("k6_st.s", "w").write(gen(True))
    for W in (4, 6, 8, 12):
        open(f"k6w{W}_st.s", "w").write(gen(True, W=W))
    open("k6w8q_st.s", "w").write(gen(True, W=8, qfirst=True))
```
